```python
import torch

def _softmax(x, axis=-1):
    return torch.softmax(x, dim=axis)
def _gelu(x):
    return torch.nn.functional.gelu(x, approximate="tanh")
def _silu(x):
    return torch.nn.functional.silu(x)
def _sigmoid(x):
    return torch.sigmoid(x)
def _layernorm(x, axis=-1, eps=1e-5):
    m = x.mean(dim=axis, keepdim=True)
    v = x.var(dim=axis, keepdim=True, unbiased=False)
    return (x - m) / torch.sqrt(v + eps)
def _scatter_add(tgt, idx, src, axis=0):
    return tgt.clone().index_add_(axis, idx, src)
def _segment_sum(src, seg, n):
    out = torch.zeros((n,) + src.shape[1:], dtype=src.dtype)
    return out.index_add_(0, seg, src)
def _pad(x, pw):
    flat = tuple(v for pair in reversed(pw) for v in pair)
    return torch.nn.functional.pad(x, flat)

kernel_name = 'gated_mix__spectral_fnet__glu_gated_glu__prompt'

def setup_inputs():

    _w = (lambda a: (lambda t: t.to(torch.bfloat16) if t.is_floating_point() else t)(torch.as_tensor(a)))
    def _A_setup():
        B, S, D = 1, 2048, 512
        ns = torch.arange(S)[:, None] * torch.arange(S)[None, :]
        nd = torch.arange(D)[:, None] * torch.arange(D)[None, :]
        Ws_re = torch.cos(-2.0 * torch.pi * ns / S).to(float)
        Ws_im = torch.sin(-2.0 * torch.pi * ns / S).to(float)
        Wd_re = torch.cos(-2.0 * torch.pi * nd / D).to(float)
        Wd_im = torch.sin(-2.0 * torch.pi * nd / D).to(float)
        return {
            "x": _w((lambda *s: torch.randn(*s, dtype=torch.bfloat16) * 0.05)(B, S, D)),
            "dft_seq_re": _w(Ws_re),
            "dft_seq_im": _w(Ws_im),
            "dft_hid_re": _w(Wd_re),
            "dft_hid_im": _w(Wd_im),
        }
    _A_in = _A_setup()

    def _B_setup():
        B, S, D, F = 1, 2048, 512, 1792
        return {
            "x": _w((lambda *s: torch.randn(*s, dtype=torch.bfloat16) * 0.05)(B, S, D)),
            "w_gate": _w((lambda *s: torch.randn(*s, dtype=torch.bfloat16) * 1.6)(D, F)),
            "w_up": _w((lambda *s: torch.randn(*s, dtype=torch.bfloat16) * 0.8)(D, F)),
            "w_down": _w((lambda *s: torch.randn(*s, dtype=torch.bfloat16) * 0.8)(F, D)),
        }
    _B_in = _B_setup()

    return {
        "A_x": _A_in["x"],
        "A_dft_seq_re": _A_in["dft_seq_re"],
        "A_dft_seq_im": _A_in["dft_seq_im"],
        "A_dft_hid_re": _A_in["dft_hid_re"],
        "A_dft_hid_im": _A_in["dft_hid_im"],
        "B_x": _B_in["x"],
        "B_w_gate": _B_in["w_gate"],
        "B_w_up": _B_in["w_up"],
        "B_w_down": _B_in["w_down"],
        "gate_w": _w((lambda *s: torch.randn(*s, dtype=torch.bfloat16) * 0.05)(512) * 16.0),
    }

def reference(A_x, A_dft_seq_re, A_dft_seq_im, A_dft_hid_re, A_dft_hid_im, B_x, B_w_gate, B_w_up, B_w_down, gate_w):
    def _A_ref(x, dft_seq_re, dft_seq_im, dft_hid_re, dft_hid_im):
        a = torch.einsum("bsd,ed->bse", x, dft_hid_re)
        b = torch.einsum("bsd,ed->bse", x, dft_hid_im)
        y = torch.einsum("ts,bse->bte", dft_seq_re, a) - torch.einsum("ts,bse->bte", dft_seq_im, b)
        return y

    def _B_ref(x, w_gate, w_up, w_down):
        g = torch.einsum("bsd,df->bsf", x, w_gate)
        u = torch.einsum("bsd,df->bsf", x, w_up)
        h = _sigmoid(g) * u
        return torch.einsum("bsf,fd->bsd", h, w_down)

    x = A_x
    g = _sigmoid((x * gate_w).sum(-1, keepdims=True))
    a = _A_ref(x, A_dft_seq_re, A_dft_seq_im, A_dft_hid_re, A_dft_hid_im)
    b = _B_ref(x, B_w_gate, B_w_up, B_w_down)
    return g * a + (1 - g) * b
```

```python
import sys

HEADER = open("gated_mix__spectral_fnet__glu_gated_glu__prompt.s.ref").read().split("; Override launch geometry")[0]

K1 = "gated_mix__spectral_fnet__glu_gated_glu__prompt_kernel"
K2 = "gmix_stage2_kernel"

A2F = 0
TT_STRIDE = 176 * 2048
A2F_SIZE = 32 * TT_STRIDE
B2F = A2F_SIZE
B2F_SIZE = 8 * TT_STRIDE
GATE = B2F + B2F_SIZE
GATE_SIZE = 8192

class Asm:
    def __init__(self):
        self.l = []
        self.n = 0
    def __call__(self, s):
        self.l.append("    " + s)
    def label(self, s):
        self.l.append(s + ":")
    def c(self, s):
        self.l.append("    ; " + s)
    def newlabel(self, p="L"):
        self.n += 1
        return f"{p}_{self.n}"
    def text(self):
        return "\n".join(self.l) + "\n"

def vr(b, n=1):
    return f"v{b}" if n == 1 else f"v[{b}:{b+n-1}]"
def ar(b, n=1):
    return f"a{b}" if n == 1 else f"a[{b}:{b+n-1}]"
def sr(b, n=1):
    return f"s{b}" if n == 1 else f"s[{b}:{b+n-1}]"

def srd(a, dst, plo, size, off=None):
    if off:
        a(f"s_add_u32 s{dst}, s{plo}, {off:#x}")
        a(f"s_addc_u32 s{dst+1}, s{plo+1}, 0")
    else:
        a(f"s_mov_b32 s{dst}, s{plo}")
        a(f"s_mov_b32 s{dst+1}, s{plo+1}")
    a(f"s_mov_b32 s{dst+2}, {size:#x}")
    a(f"s_mov_b32 s{dst+3}, 0x00020000")

S_WID = 3
P_AX, P_CR, P_CI, P_HR, P_HI, P_BX, P_WG, P_WU = 16, 18, 20, 22, 24, 26, 28, 30
P_WD, P_GW, P_OUT, P_DBG, P_WS = 32, 34, 36, 38, 40
R_T, R_M1, R_M2, R_O = 44, 48, 52, 56
S_XCD, S_IDX = 4, 5
S_T0, S_M0 = 60, 61
S_SLOT = 62
S_CNT = 63
S_LW = 64
S_KT = 65
S_TMP = 66
S_OBASE = 72
S_JOB = 73

V_LANE = 250
V_TMP = 240

def gemm_role(a, tag, NM, LA, S, nK, njobs, pitchT, pitchM, cfg):
    SB = 16384 * (1 + NM)
    DPT = 4 * (1 + NM)
    G = nK * njobs
    nsets = 4 if LA >= 2 else 2
    L_loader = f"{tag}_loader"
    L_end = f"{tag}_end"
    a(f"s_cmp_ge_u32 s{S_WID}, 4")
    a(f"s_cbranch_scc1 {L_loader}")

    ACC = 0
    NACC = NM * 4
    FR = 128
    R = 2 + NM * 4
    SETSZ = 8 + NM * 8
    VT = 224
    VM = 228
    VT0 = 230
    VM0 = 234
    a.c(f"{tag}: compute wave setup")
    a(f"s_lshr_b32 s{S_TMP}, s{S_WID}, 1")
    a(f"s_and_b32 s{S_TMP+1}, s{S_WID}, 1")
    a(f"v_and_b32 v{V_TMP}, 31, v{V_LANE}")
    a(f"v_lshrrev_b32 v{V_TMP+1}, 5, v{V_LANE}")
    a(f"v_bfe_u32 v{V_TMP+2}, v{V_LANE}, 1, 3")
    a(f"v_xor_b32 v{V_TMP+1}, v{V_TMP+1}, v{V_TMP+2}")
    a(f"v_lshlrev_b32 v{V_TMP+1}, 4, v{V_TMP+1}")
    a(f"v_lshl_add_u32 v{V_TMP}, v{V_TMP}, 7, v{V_TMP+1}")
    a(f"s_lshl_b32 s{S_TMP+2}, s{S_TMP}, 13")
    a(f"v_add_u32 v{VT0}, s{S_TMP+2}, v{V_TMP}")
    for j in range(1, 4):
        a(f"v_xor_b32 v{VT0+j}, {32*j}, v{VT0}")
    a(f"v_bfe_u32 v{V_TMP}, v{V_LANE}, 2, 2")
    a(f"v_lshrrev_b32 v{V_TMP+1}, 5, v{V_LANE}")
    a(f"v_lshl_add_u32 v{V_TMP+1}, v{V_TMP+1}, 3, v{V_TMP}")
    a(f"v_lshlrev_b32 v{V_TMP+1}, 8, v{V_TMP+1}")
    a(f"v_bfe_u32 v{V_TMP+2}, v{V_LANE}, 4, 1")
    a(f"v_lshl_add_u32 v{V_TMP+1}, v{V_TMP+2}, 5, v{V_TMP+1}")
    a(f"v_and_b32 v{V_TMP+2}, 3, v{V_LANE}")
    a(f"v_lshl_add_u32 v{V_TMP+1}, v{V_TMP+2}, 3, v{V_TMP+1}")
    a(f"v_add_u32 v{V_TMP+1}, 16384, v{V_TMP+1}")
    a(f"s_lshl_b32 s{S_TMP+2}, s{S_TMP+1}, 1")
    for mi in range(2):
        a(f"s_add_u32 s{S_TMP+3}, s{S_TMP+2}, {mi}")
        a(f"v_xor_b32 v{V_TMP+2}, s{S_TMP+3}, v{V_TMP}")
        a(f"v_lshl_add_u32 v{VM0+mi}, v{V_TMP+2}, 6, v{V_TMP+1}")
    VO = 236
    a(f"s_mul_i32 s{S_TMP+2}, s{S_TMP}, {TT_STRIDE}")
    a(f"s_lshl_b32 s{S_TMP+3}, s{S_TMP+1}, 13")
    a(f"s_add_u32 s{S_TMP+2}, s{S_TMP+2}, s{S_TMP+3}")
    a(f"v_lshlrev_b32 v{VO}, 4, v{V_LANE}")
    a(f"v_add_u32 v{VO}, s{S_TMP+2}, v{VO}")
    a(f"s_mov_b32 s{S_SLOT}, 0")
    a(f"s_mov_b32 s{S_JOB}, 0")

    def tfrag(st, ni):
        return FR + st * SETSZ + ni * 4
    def mfrag(st, m, mi):
        return FR + st * SETSZ + 8 + (m * 2 + mi) * 4
    def acc(m, mi, ni):
        return ACC + ((m * 2 + mi) * 2 + ni) * 16
    def reads(j, st):
        out = []
        for ni in range(2):
            out.append(f"ds_read_b128 {vr(tfrag(st, ni), 4)}, v{VT+j} offset:{ni*4096}")
        for m in range(NM):
            for mi in range(2):
                for q in range(2):
                    out.append(f"ds_read_b64_tr_b16 {vr(mfrag(st, m, mi)+2*q, 2)}, v{VM+mi} offset:{m*16384 + j*4096 + q*1024}")
        return out
    def mfmas(st):
        out = []
        for m in range(NM):
            for mi in range(2):
                for ni in range(2):
                    d = vr(acc(m, mi, ni), 16)
                    out.append(f"v_mfma_f32_32x32x16_bf16 {d}, {vr(mfrag(st, m, mi), 4)}, {vr(tfrag(st, ni), 4)}, {d}")
        return out
    def set_addr():
        for j in range(4):
            a(f"v_add_u32 v{VT+j}, s{S_SLOT}, v{VT0+j}")
        for mi in range(2):
            a(f"v_add_u32 v{VM+mi}, s{S_SLOT}, v{VM0+mi}")
    def next_slot():
        a(f"s_add_u32 s{S_SLOT}, s{S_SLOT}, {SB}")
        a(f"s_cmp_eq_u32 s{S_SLOT}, {S*SB}")
        a(f"s_cselect_b32 s{S_SLOT}, 0, s{S_SLOT}")
    def interleave(mf, rd):
        n = len(mf)
        per = (len(rd) + n - 2) // max(1, n - 1) if rd else 0
        ri = 0
        for i, m in enumerate(mf):
            a(m)
            if i < n - 1 or True:
                k = 0
                while ri < len(rd) and k < per:
                    a(rd[ri]); ri += 1; k += 1
        while ri < len(rd):
            a(rd[ri]); ri += 1

    L_job = f"{tag}_job"
    a.label(L_job)
    for i in range(NACC * 16):
        a(f"v_mov_b32 v{ACC+i}, 0")
    a("s_barrier")
    set_addr()
    for s in range(LA):
        for r_ in reads(s, s % nsets):
            a(r_)
    a(f"s_mov_b32 s{S_CNT}, {nK-1}")
    L_loop = f"{tag}_cloop"
    a.label(L_loop)
    for j in range(4):
        if j == 4 - LA:
            a("s_waitcnt lgkmcnt(0)")
            a("s_barrier")
            next_slot()
            set_addr()
        else:
            a(f"s_waitcnt lgkmcnt({(LA-1)*R})")
        interleave(mfmas(j % nsets), reads((j + LA) % 4, (j + LA) % nsets))
    a(f"s_sub_u32 s{S_CNT}, s{S_CNT}, 1")
    a(f"s_cmp_lg_u32 s{S_CNT}, 0")
    a(f"s_cbranch_scc1 {L_loop}")
    for j in range(4):
        rem = 4 - 1 - j
        if j + LA < 4:
            a(f"s_waitcnt lgkmcnt({(LA-1)*R})")
            interleave(mfmas(j % nsets), reads(j + LA, (j + LA) % nsets))
        else:
            a(f"s_waitcnt lgkmcnt({min(rem, LA-1)*R})")
            interleave(mfmas(j % nsets), [])
    next_slot()
    a("s_nop 15")
    a("s_nop 3")
    TP = FR
    def store_tile(src, mi, ni):
        for b in range(2):
            t = TP + 32 + ((mi * 2 + ni) * 2 + b) * 4
            for h in range(2):
                g_ = 2 * b + h
                a(f"v_cvt_pk_bf16_f32 v{t+2*h}, v{src+4*g_}, v{src+4*g_+1}")
                a(f"v_cvt_pk_bf16_f32 v{t+2*h+1}, v{src+4*g_+2}, v{src+4*g_+3}")
            a("s_nop 1")
            a(f"v_permlane32_swap_b32 v{t}, v{t+2}")
            a(f"v_permlane32_swap_b32 v{t+1}, v{t+3}")
            off = (mi * 2 + b) * 2048 + ni * 1024
            a(f"buffer_store_dwordx4 {vr(t,4)}, v{VO}, s[{R_O}:{R_O+3}], s{S_OBASE} offen offset:{off & 4095}" if off < 4096 else
              f"buffer_store_dwordx4 {vr(t,4)}, v{VO+1}, s[{R_O}:{R_O+3}], s{S_OBASE} offen offset:{off - 4096}")
    a(f"v_add_u32 v{VO+1}, 4096, v{VO}")
    if NM == 1:
        for mi in range(2):
            for ni in range(2):
                store_tile(acc(0, mi, ni), mi, ni)
    else:
        a(f"s_mov_b32 s{S_TMP+4}, 0xbfb8aa3b")
        for mi in range(2):
            for ni in range(2):
                g_ = acc(0, mi, ni); u_ = acc(1, mi, ni)
                for i in range(16):
                    a(f"v_mul_f32 v{g_+i}, s{S_TMP+4}, v{g_+i}")
                for i in range(16):
                    a(f"v_exp_f32 v{g_+i}, v{g_+i}")
                for i in range(16):
                    a(f"v_add_f32 v{g_+i}, 1.0, v{g_+i}")
                for i in range(16):
                    a(f"v_rcp_f32 v{g_+i}, v{g_+i}")
                for i in range(16):
                    a(f"v_mul_f32 v{g_+i}, v{g_+i}, v{u_+i}")
                store_tile(g_, mi, ni)
    if njobs > 1:
        a(f"s_add_u32 s{S_OBASE}, s{S_OBASE}, {2*TT_STRIDE}")
        a(f"s_add_u32 s{S_JOB}, s{S_JOB}, 1")
        a(f"s_cmp_lt_u32 s{S_JOB}, {njobs}")
        a(f"s_cbranch_scc1 {L_job}")
    a(f"s_branch {L_end}")

    a.label(L_loader)
    VLT = 0
    VLM = 4
    a(f"s_sub_u32 s{S_TMP}, s{S_WID}, 4")
    a(f"s_lshl_b32 s{S_LW}, s{S_TMP}, 12")
    a(f"v_lshrrev_b32 v{V_TMP}, 3, v{V_LANE}")
    a(f"s_lshl_b32 s{S_TMP+1}, s{S_TMP}, 5")
    a(f"v_add_u32 v{V_TMP}, s{S_TMP+1}, v{V_TMP}")
    a(f"v_and_b32 v{V_TMP+1}, 7, v{V_LANE}")
    a(f"v_lshrrev_b32 v{V_TMP+2}, 4, v{V_LANE}")
    a(f"v_xor_b32 v{V_TMP+1}, v{V_TMP+1}, v{V_TMP+2}")
    for i in range(4):
        a(f"v_add_u32 v{V_TMP+3}, {8*i}, v{V_TMP}")
        a(f"v_mul_u32_u24 v{V_TMP+3}, {pitchT}, v{V_TMP+3}")
        a(f"v_xor_b32 v{V_TMP+4}, {(i&1)*4}, v{V_TMP+1}")
        a(f"v_lshl_add_u32 v{VLT+i}, v{V_TMP+4}, 4, v{V_TMP+3}")
    a(f"v_lshrrev_b32 v{V_TMP}, 4, v{V_LANE}")
    a(f"v_lshlrev_b32 v{V_TMP+2}, 2, v{V_TMP}")
    a(f"v_and_b32 v{V_TMP+1}, 15, v{V_LANE}")
    a(f"v_xor_b32 v{V_TMP+1}, v{V_TMP+1}, v{V_TMP+2}")
    a(f"s_lshl_b32 s{S_TMP+1}, s{S_TMP}, 4")
    a(f"v_add_u32 v{V_TMP}, s{S_TMP+1}, v{V_TMP}")
    for i in range(4):
        a(f"v_add_u32 v{V_TMP+3}, {4*i}, v{V_TMP}")
        a(f"v_mul_u32_u24 v{V_TMP+3}, {pitchM}, v{V_TMP+3}")
        a(f"v_lshl_add_u32 v{VLM+i}, v{V_TMP+1}, 4, v{V_TMP+3}")
    a(f"s_mov_b32 s{S_SLOT}, 0")
    a(f"s_mov_b32 s{S_KT}, 0")
    def issue():
        a(f"s_add_u32 s{S_TMP+2}, s{S_SLOT}, s{S_LW}")
        for i in range(4):
            a(f"s_add_u32 m0, s{S_TMP+2}, {i*1024}")
            a("s_nop 0")
            a(f"buffer_load_dwordx4 v{VLT+i}, s[{R_T}:{R_T+3}], s{S_T0} offen lds")
        for m in range(NM):
            rm = R_M1 if m == 0 else R_M2
            for i in range(4):
                a(f"s_add_u32 m0, s{S_TMP+2}, {16384*(1+m) + i*1024}")
                a("s_nop 0")
                a(f"buffer_load_dwordx4 v{VLM+i}, s[{rm}:{rm+3}], s{S_M0} offen lds")
        next_slot()
        a(f"s_add_u32 s{S_T0}, s{S_T0}, 128")
        a(f"s_add_u32 s{S_M0}, s{S_M0}, {64*pitchM}")
        if njobs > 1:
            lab = a.newlabel(f"{tag}_nj")
            a(f"s_add_u32 s{S_KT}, s{S_KT}, 1")
            a(f"s_cmp_lg_u32 s{S_KT}, {nK}")
            a(f"s_cbranch_scc1 {lab}")
            a(f"s_mov_b32 s{S_KT}, 0")
            a(f"s_add_u32 s{S_T0}, s{S_T0}, {128*pitchT - nK*128}")
            a(f"s_sub_u32 s{S_M0}, s{S_M0}, {nK*64*pitchM}")
            a.label(lab)
    for g in range(S - 1):
        issue()
    a(f"s_mov_b32 s{S_CNT}, {G-(S-1)}")
    L_ll = f"{tag}_lloop"
    a.label(L_ll)
    a(f"s_waitcnt vmcnt({(S-2)*DPT})")
    a("s_barrier")
    issue()
    a(f"s_sub_u32 s{S_CNT}, s{S_CNT}, 1")
    a(f"s_cmp_lg_u32 s{S_CNT}, 0")
    a(f"s_cbranch_scc1 {L_ll}")
    for g in range(G - (S - 1), G):
        a(f"s_waitcnt vmcnt({(G-1-g)*DPT})")
        a("s_barrier")
    a.label(L_end)
    a("s_endpgm")

def aux_role(a):
    a.c("AUX: gate, H relayout, Wd transpose")
    AW = S_TMP
    a(f"s_sub_u32 s{S_TMP+1}, s{S_IDX}, 30")
    a(f"s_lshl_b32 s{S_TMP+1}, s{S_TMP+1}, 3")
    a(f"s_add_u32 s{S_TMP+1}, s{S_TMP+1}, s{S_XCD}")
    a(f"s_lshl_b32 s{AW}, s{S_TMP+1}, 3")
    a(f"s_add_u32 s{AW}, s{AW}, s{S_WID}")
    RX, RG, RW = R_T, R_M1, R_M2
    srd(a, RX, P_AX, 2048*512*2)
    srd(a, RG, P_GW, 1024)
    srd(a, RW, P_WS, GATE + GATE_SIZE)
    a(f"v_lshrrev_b32 v1, 2, v{V_LANE}")
    a(f"s_lshl_b32 s{S_TMP+1}, s{AW}, 4")
    a(f"v_add_u32 v1, s{S_TMP+1}, v1")
    a(f"v_and_b32 v2, 3, v{V_LANE}")
    a(f"v_lshlrev_b32 v2, 8, v2")
    a(f"v_lshl_add_u32 v3, v1, 10, v2")
    a("v_mov_b32 v4, 0")
    for half in range(2):
        for i in range(8):
            a(f"buffer_load_dwordx4 {vr(16+8*i,4)}, v3, s[{RX}:{RX+3}], 0 offen offset:{(half*8+i)*16}")
            a(f"buffer_load_dwordx4 {vr(20+8*i,4)}, v2, s[{RG}:{RG+3}], 0 offen offset:{(half*8+i)*16}")
        a("s_waitcnt vmcnt(0)")
        for i in range(8):
            for d in range(4):
                a(f"v_dot2_f32_bf16 v4, v{16+8*i+d}, v{20+8*i+d}, v4")
    a("s_nop 3")
    a("v_add_f32 v4, v4, v4 quad_perm:[1,0,3,2] row_mask:0xf bank_mask:0xf")
    a("s_nop 1")
    a("v_add_f32 v4, v4, v4 quad_perm:[2,3,0,1] row_mask:0xf bank_mask:0xf")
    a("v_mul_f32 v4, 0xbfb8aa3b, v4")
    a("v_exp_f32 v4, v4")
    a("s_nop 0")
    a("v_add_f32 v4, 1.0, v4")
    a("v_rcp_f32 v4, v4")
    a(f"v_lshlrev_b32 v5, 2, v1")
    a(f"v_add_u32 v5, {GATE:#x}, v5")
    a("s_nop 0")
    a(f"buffer_store_dword v4, v5, s[{RW}:{RW+3}], 0 offen")
    a(f"s_bitcmp1_b32 s{AW}, 3")
    a(f"s_cselect_b32 s{S_TMP+2}, s{P_HI}, s{P_HR}")
    a(f"s_cselect_b32 s{S_TMP+3}, s{P_HI+1}, s{P_HR+1}")
    a(f"s_cselect_b32 s{S_TMP+5}, 0x80008000, 0")
    srd(a, RX, S_TMP+2, 512*512*2)
    a(f"s_lshr_b32 s{S_TMP+1}, s{AW}, 4")
    a(f"s_and_b32 s{S_TMP+4}, s{AW}, 15")
    a(f"v_and_b32 v1, 31, v{V_LANE}")
    a(f"s_lshl_b32 s{S_TMP+6}, s{S_TMP+1}, 6")
    a(f"v_add_u32 v1, s{S_TMP+6}, v1")
    a(f"v_lshlrev_b32 v1, 10, v1")
    a(f"v_lshrrev_b32 v2, 5, v{V_LANE}")
    a(f"v_lshl_add_u32 v1, v2, 4, v1")
    a(f"s_and_b32 s{S_TMP+6}, s{S_TMP+4}, 7")
    a(f"s_lshl_b32 s{S_TMP+6}, s{S_TMP+6}, 7")
    for i in range(8):
        off = (i >> 1) * 32
        if i & 1:
            if i == 1:
                a(f"v_add_u32 v2, 32768, v1")
            a(f"buffer_load_dwordx4 {vr(16+4*i,4)}, v2, s[{RX}:{RX+3}], s{S_TMP+6} offen offset:{off}")
        else:
            a(f"buffer_load_dwordx4 {vr(16+4*i,4)}, v1, s[{RX}:{RX+3}], s{S_TMP+6} offen offset:{off}")
    a(f"s_mul_i32 s{S_TMP+1}, s{S_TMP+1}, {TT_STRIDE}")
    a(f"s_lshl_b32 s{S_TMP+4}, s{S_TMP+4}, 13")
    a(f"s_add_u32 s{S_TMP+1}, s{S_TMP+1}, s{S_TMP+4}")
    a(f"s_add_u32 s{S_TMP+1}, s{S_TMP+1}, {B2F:#x}")
    a(f"v_lshlrev_b32 v3, 4, v{V_LANE}")
    a(f"v_add_u32 v4, 4096, v3")
    a("s_waitcnt vmcnt(0)")
    for i in range(32):
        a(f"v_xor_b32 v{16+i}, s{S_TMP+5}, v{16+i}")
    for i in range(8):
        off = i * 1024
        a(f"buffer_store_dwordx4 {vr(16+4*i,4)}, v{3 if off < 4096 else 4}, s[{RW}:{RW+3}], s{S_TMP+1} offen offset:{off & 4095}")
    srd(a, RX, P_WD, 1792*512*2)
    a(f"s_mov_b32 s{S_TMP+5}, 0x05040100")
    a(f"s_mov_b32 s{S_TMP+6}, 0x07060302")
    a(f"v_lshlrev_b32 v1, 2, v{V_LANE}")
    a(f"v_lshrrev_b32 v2, 5, v{V_LANE}")
    a(f"v_mul_u32_u24 v2, {TT_STRIDE}, v2")
    a(f"v_bfe_u32 v3, v{V_LANE}, 4, 1")
    a(f"v_lshl_add_u32 v2, v3, 10, v2")
    a(f"v_and_b32 v3, 15, v{V_LANE}")
    a(f"v_lshl_add_u32 v2, v3, 5, v2")
    a(f"s_mul_i32 s{S_TMP+1}, s{AW}, 7")
    for i in range(7):
        a(f"s_add_u32 s{S_TMP+4}, s{S_TMP+1}, {i}")
        a(f"s_lshr_b32 s{S_TMP+2}, s{S_TMP+4}, 2")
        a(f"s_and_b32 s{S_TMP+3}, s{S_TMP+4}, 3")
        a(f"s_lshl_b32 s{S_T0}, s{S_TMP+2}, 13")
        a(f"s_lshl_b32 s{S_M0}, s{S_TMP+3}, 8")
        a(f"s_add_u32 s{S_T0}, s{S_T0}, s{S_M0}")
        for ff in range(8):
            o = ff * 1024
            if o < 4096:
                a(f"buffer_load_dword v{16+ff}, v1, s[{RX}:{RX+3}], s{S_T0} offen offset:{o}")
            else:
                if ff == 4:
                    a(f"s_add_u32 s{S_M0}, s{S_T0}, 4096")
                a(f"buffer_load_dword v{16+ff}, v1, s[{RX}:{RX+3}], s{S_M0} offen offset:{o-4096}")
        a(f"s_mul_i32 s{S_SLOT}, s{S_TMP+3}, {2*TT_STRIDE}")
        a(f"s_lshr_b32 s{S_CNT}, s{S_TMP+2}, 1")
        a(f"s_lshl_b32 s{S_CNT}, s{S_CNT}, 11")
        a(f"s_add_u32 s{S_SLOT}, s{S_SLOT}, s{S_CNT}")
        a(f"s_and_b32 s{S_CNT}, s{S_TMP+2}, 1")
        a(f"s_lshl_b32 s{S_CNT}, s{S_CNT}, 9")
        a(f"s_add_u32 s{S_SLOT}, s{S_SLOT}, s{S_CNT}")
        a(f"s_add_u32 s{S_SLOT}, s{S_SLOT}, {B2F + 64*2048:#x}")
        a("s_waitcnt vmcnt(0)")
        for p in range(4):
            a(f"v_perm_b32 v{32+p}, v{16+2*p+1}, v{16+2*p}, s{S_TMP+5}")
            a(f"v_perm_b32 v{36+p}, v{16+2*p+1}, v{16+2*p}, s{S_TMP+6}")
        a(f"buffer_store_dwordx4 v[32:35], v2, s[{RW}:{RW+3}], s{S_SLOT} offen")
        a(f"buffer_store_dwordx4 v[36:39], v2, s[{RW}:{RW+3}], s{S_SLOT} offen offset:16")
        a("s_nop 1")
    a("s_endpgm")

def stage1(a, cfg):
    a(f".globl {K1}")
    a(".p2align 8")
    a(f".type {K1},@function")
    a.label(K1)
    a("s_cmp_ge_u32 s2, 256")
    a("s_cbranch_scc1 S1_exit")
    a("s_load_dwordx16 s[16:31], s[0:1], 0")
    a("s_load_dwordx8 s[32:39], s[0:1], 64")
    a("s_load_dwordx2 s[40:41], s[0:1], 96")
    a("v_lshrrev_b32 v1, 6, v0")
    a(f"v_and_b32 v{V_LANE}, 63, v0")
    a(f"v_readfirstlane_b32 s{S_WID}, v1")
    a(f"s_and_b32 s{S_XCD}, s2, 7")
    a(f"s_lshr_b32 s{S_IDX}, s2, 3")
    a("s_waitcnt lgkmcnt(0)")
    a(f"s_cmp_ge_u32 s{S_IDX}, 30")
    a("s_cbranch_scc1 S1_aux")
    srd(a, R_O, P_WS, A2F_SIZE)
    a(f"s_cmp_ge_u32 s{S_IDX}, 16")
    a("s_cbranch_scc1 S1_typeB")
    a(f"s_lshl_b32 s{S_TMP}, s{S_XCD}, 2")
    a(f"s_lshr_b32 s{S_TMP+1}, s{S_IDX}, 2")
    a(f"s_add_u32 s{S_TMP}, s{S_TMP}, s{S_TMP+1}")
    a(f"s_and_b32 s{S_TMP+1}, s{S_IDX}, 3")
    a(f"s_cmp_ge_u32 s{S_TMP}, 16")
    a(f"s_cselect_b32 s{S_TMP+2}, s{P_CI}, s{P_CR}")
    a(f"s_cselect_b32 s{S_TMP+3}, s{P_CI+1}, s{P_CR+1}")
    a(f"s_cselect_b32 s{S_TMP+4}, 32, 0")
    srd(a, R_T, S_TMP+2, 2048*2048*2)
    srd(a, R_M1, P_AX, 2048*512*2)
    a(f"s_and_b32 s{S_TMP}, s{S_TMP}, 15")
    a(f"s_lshl_b32 s{S_T0}, s{S_TMP}, 19")
    a(f"s_lshl_b32 s{S_M0}, s{S_TMP+1}, 8")
    a(f"s_mul_i32 s{S_OBASE}, s{S_TMP}, {2*TT_STRIDE}")
    a(f"s_lshl_b32 s{S_TMP+1}, s{S_TMP+1}, 3")
    a(f"s_add_u32 s{S_TMP+1}, s{S_TMP+1}, s{S_TMP+4}")
    a(f"s_lshl_b32 s{S_TMP+1}, s{S_TMP+1}, 11")
    a(f"s_add_u32 s{S_OBASE}, s{S_OBASE}, s{S_TMP+1}")
    gemm_role(a, "TA", NM=1, LA=cfg.get("LA_A", 2), S=4, nK=32, njobs=1, pitchT=4096, pitchM=1024, cfg=cfg)
    a.label("S1_typeB")
    srd(a, R_T, P_AX, 2048*512*2)
    srd(a, R_M1, P_WG, 512*1792*2)
    srd(a, R_M2, P_WU, 512*1792*2)
    a(f"s_sub_u32 s{S_TMP+1}, s{S_IDX}, 16")
    a(f"s_lshl_b32 s{S_T0}, s{S_XCD}, 18")
    a(f"s_lshl_b32 s{S_M0}, s{S_TMP+1}, 8")
    a(f"s_mul_i32 s{S_OBASE}, s{S_XCD}, {4*TT_STRIDE}")
    a(f"s_lshl_b32 s{S_TMP+1}, s{S_TMP+1}, 3")
    a(f"s_add_u32 s{S_TMP+1}, s{S_TMP+1}, 64")
    a(f"s_lshl_b32 s{S_TMP+1}, s{S_TMP+1}, 11")
    a(f"s_add_u32 s{S_OBASE}, s{S_OBASE}, s{S_TMP+1}")
    gemm_role(a, "TB", NM=2, LA=1, S=3, nK=8, njobs=2, pitchT=1024, pitchM=3584, cfg=cfg)
    a.label("S1_aux")
    aux_role(a)
    a.label("S1_exit")
    a("s_endpgm")

def stage2(a, cfg):
    D = cfg.get("D2", 8)
    a(f".globl {K2}")
    a(".p2align 8")
    a(f".type {K2},@function")
    a.label(K2)
    a("s_cmp_ge_u32 s2, 256")
    a("s_cbranch_scc1 S2_exit")
    a("s_load_dwordx2 s[4:5], s[0:1], 80")
    a("s_load_dwordx2 s[6:7], s[0:1], 96")
    a("v_lshrrev_b32 v1, 6, v0")
    a("v_and_b32 v200, 63, v0")
    a("v_readfirstlane_b32 s3, v1")
    a("s_and_b32 s8, s2, 7")
    a("s_lshr_b32 s9, s2, 3")
    a("s_lshl_b32 s10, s8, 2")
    a("s_lshr_b32 s11, s9, 3")
    a("s_add_u32 s10, s10, s11")
    a("s_and_b32 s11, s9, 7")
    a("s_waitcnt lgkmcnt(0)")
    srd(a, 12, 6, A2F_SIZE)
    srd(a, 16, 6, B2F_SIZE, off=B2F)
    srd(a, 20, 6, GATE_SIZE, off=GATE)
    srd(a, 24, 4, 2048*512*2)
    a("v_lshlrev_b32 v201, 4, v200")
    a("v_and_b32 v202, 31, v200")
    a("s_lshl_b32 s28, s10, 6")
    a("v_add_u32 v202, s28, v202")
    a("v_lshlrev_b32 v202, 2, v202")
    a("buffer_load_dword v204, v202, s[20:23], 0 offen")
    a("buffer_load_dword v205, v202, s[20:23], 0 offen offset:128")
    a(f"s_mul_i32 s28, s10, {TT_STRIDE}")
    a(f"s_mul_i32 s29, s11, {TT_STRIDE}")
    a("s_lshl_b32 s30, s3, 15")
    a(f"s_mul_i32 s31, s3, {28*2048}")
    a(f"s_add_u32 s31, s31, {64*2048}")
    a("s_add_u32 s32, s28, s30")
    a("s_add_u32 s33, s29, s30")
    a("s_add_u32 s34, s28, s31")
    a("s_add_u32 s35, s29, s31")
    for i in range(128):
        a(f"v_mov_b32 v{i}, 0")
    NS = 44
    def load(i):
        if i == 16:
            a("s_mov_b32 s32, s34")
            a("s_mov_b32 s33, s35")
        b = (i % D) * 16
        a(f"buffer_load_dwordx4 {ar(b,4)}, v201, s[12:15], s32 offen")
        a(f"buffer_load_dwordx4 {ar(b+4,4)}, v201, s[12:15], s32 offen offset:1024")
        a(f"buffer_load_dwordx4 {ar(b+8,4)}, v201, s[16:19], s33 offen")
        a(f"buffer_load_dwordx4 {ar(b+12,4)}, v201, s[16:19], s33 offen offset:1024")
        a("s_add_u32 s32, s32, 2048")
        a("s_add_u32 s33, s33, 2048")
    for i in range(D):
        load(i)
    for i in range(NS):
        out = min(D - 1, NS - 1 - i)
        a(f"s_waitcnt vmcnt({out*4})")
        b = (i % D) * 16
        base = 0 if i < 16 else 64
        for mi in range(2):
            for ni in range(2):
                d = vr(base + (mi * 2 + ni) * 16, 16)
                a(f"v_mfma_f32_32x32x16_bf16 {d}, {ar(b+8+4*mi,4)}, {ar(b+4*ni,4)}, {d}")
        if i + D < NS:
            load(i + D)
    a("s_nop 15")
    a("s_nop 3")
    for mi in range(2):
        for ni in range(2):
            for r in range(16):
                y = (mi * 2 + ni) * 16 + r
                a(f"v_sub_f32 v{y}, v{y}, v{64+y}")
                a(f"v_fma_f32 v{y}, v{y}, v{204+ni}, v{64+y}")
    PIT = 272
    WSZ = 64 * PIT
    a("v_and_b32 v202, 31, v200")
    a(f"v_mul_u32_u24 v202, {PIT}, v202")
    a("v_lshrrev_b32 v203, 5, v200")
    a("v_lshl_add_u32 v202, v203, 4, v202")
    a(f"s_mul_i32 s28, s3, {WSZ}")
    a("v_add_u32 v202, s28, v202")
    for mi in range(2):
        for ni in range(2):
            for q in range(4):
                src = (mi * 2 + ni) * 16 + 4 * q
                off = ni * 32 * PIT + (mi * 32 + 8 * q) * 4
                a(f"ds_write_b128 v202, {vr(src,4)} offset:{off}")
    a("s_waitcnt lgkmcnt(0)")
    a("s_barrier")
    a("s_lshl_b32 s28, s3, 6")
    a("v_add_u32 v203, s28, v200")
    a("v_lshrrev_b32 v206, 2, v203")
    a("v_and_b32 v207, 3, v203")
    a(f"v_mul_u32_u24 v208, {PIT}, v206")
    a("v_lshl_add_u32 v208, v207, 6, v208")
    for w in range(4):
        for q in range(4):
            a(f"ds_read_b128 {vr(w*16+q*4,4)}, v208 offset:{w*WSZ + q*16}")
    a("s_waitcnt lgkmcnt(0)")
    for i in range(16):
        a(f"v_add_f32 v{i}, v{i}, v{16+i}")
        a(f"v_add_f32 v{32+i}, v{32+i}, v{48+i}")
    for i in range(16):
        a(f"v_add_f32 v{i}, v{i}, v{32+i}")
    for i in range(8):
        a(f"v_cvt_pk_bf16_f32 v{64+i}, v{2*i}, v{2*i+1}")
    a("s_lshl_b32 s28, s10, 16")
    a("s_lshl_b32 s29, s11, 7")
    a("s_add_u32 s28, s28, s29")
    a("v_lshlrev_b32 v206, 10, v206")
    a("v_lshl_add_u32 v206, v207, 5, v206")
    a("buffer_store_dwordx4 v[64:67], v206, s[24:27], s28 offen")
    a("buffer_store_dwordx4 v[68:71], v206, s[24:27], s28 offen offset:16")
    a.label("S2_exit")
    a("s_endpgm")
    return D * 16

def build(cfg):
    a = Asm()
    stage1(a, cfg)
    nacc = stage2(a, cfg)
    lds1 = 3 * 49152
    lds2 = 4 * 64 * 272
    out = HEADER
    out += f"; @launch kernel={K1} grid=(256,1,1) block=(512,1,1) lds={lds1}\n"
    out += f"; @launch kernel={K2} grid=(256,1,1) block=(256,1,1) lds={lds2}\n"
    out += '.amdgcn_target "amdgcn-amd-amdhsa--gfx950"\n.text\n'
    out += a.text()
    out += f""".section .rodata,"a"
.p2align 6
.amdhsa_kernel {K1}
  .amdhsa_next_free_vgpr 256
  .amdhsa_next_free_sgpr 96
  .amdhsa_accum_offset 256
  .amdhsa_group_segment_fixed_size 0
  .amdhsa_kernarg_size 104
  .amdhsa_user_sgpr_count 2
  .amdhsa_user_sgpr_kernarg_segment_ptr 1
  .amdhsa_system_sgpr_workgroup_id_x 1
.end_amdhsa_kernel
.p2align 6
.amdhsa_kernel {K2}
  .amdhsa_next_free_vgpr {256 + nacc}
  .amdhsa_next_free_sgpr 96
  .amdhsa_accum_offset 256
  .amdhsa_group_segment_fixed_size 0
  .amdhsa_kernarg_size 104
  .amdhsa_user_sgpr_count 2
  .amdhsa_user_sgpr_kernarg_segment_ptr 1
  .amdhsa_system_sgpr_workgroup_id_x 1
.end_amdhsa_kernel
"""
    return out

if __name__ == "__main__":
    cfg = {}
    outp = sys.argv[1] if len(sys.argv) > 1 else "gated_mix__spectral_fnet__glu_gated_glu__prompt.s"
    for kv in sys.argv[2:]:
        k, v = kv.split("=")
        cfg[k] = int(v)
    open(outp, "w").write(build(cfg))
    print("wrote", outp)
```

```python
import sys

HEADER = open("gated_mix__spectral_fnet__glu_gated_glu__prompt.s.ref").read().split("; Override launch geometry")[0]

K1 = "gated_mix__spectral_fnet__glu_gated_glu__prompt_kernel"
K2 = "gmix_stage2_kernel"

A2F = 0
TT_STRIDE = 176 * 2048
A2F_SIZE = 32 * TT_STRIDE
B2F = A2F_SIZE
B2F_SIZE = 8 * TT_STRIDE
GATE = B2F + B2F_SIZE
GATE_SIZE = 8192

class Asm:
    def __init__(self):
        self.l = []
        self.n = 0
    def __call__(self, s):
        self.l.append("    " + s)
    def label(self, s):
        self.l.append(s + ":")
    def c(self, s):
        self.l.append("    ; " + s)
    def newlabel(self, p="L"):
        self.n += 1
        return f"{p}_{self.n}"
    def text(self):
        return "\n".join(self.l) + "\n"

def vr(b, n=1):
    return f"v{b}" if n == 1 else f"v[{b}:{b+n-1}]"
def ar(b, n=1):
    return f"a{b}" if n == 1 else f"a[{b}:{b+n-1}]"
def sr(b, n=1):
    return f"s{b}" if n == 1 else f"s[{b}:{b+n-1}]"

def srd(a, dst, plo, size, off=None):
    if off:
        a(f"s_add_u32 s{dst}, s{plo}, {off:#x}")
        a(f"s_addc_u32 s{dst+1}, s{plo+1}, 0")
    else:
        a(f"s_mov_b32 s{dst}, s{plo}")
        a(f"s_mov_b32 s{dst+1}, s{plo+1}")
    a(f"s_mov_b32 s{dst+2}, {size:#x}")
    a(f"s_mov_b32 s{dst+3}, 0x00020000")

PROF = 0x1800000
def prof_start(a, cfg):
    if cfg.get("prof"):
        a("s_memrealtime s[80:81]")
        a("s_memtime s[82:83]")
def prof_end(a, cfg, pws, wid, stage):
    if cfg.get("prof"):
        a("s_memrealtime s[84:85]")
        a("s_memtime s[86:87]")
        a(f"s_add_u32 s88, s{pws}, {PROF + stage*0x10000:#x}")
        a(f"s_addc_u32 s89, s{pws+1}, 0")
        a("s_mov_b32 s90, 0x10000")
        a("s_mov_b32 s91, 0x00020000")
        a("s_lshl_b32 s92, s2, 3")
        a(f"s_add_u32 s92, s92, s{wid}")
        a("s_lshl_b32 s92, s92, 4")
        a("s_waitcnt lgkmcnt(0)")
        a("s_sub_u32 s86, s86, s82")
        a("v_mov_b32 v252, s80")
        a("v_mov_b32 v253, s84")
        a("v_mov_b32 v254, s86")
        a(f"v_mov_b32 v255, s{wid}")
        a("v_mov_b32 v251, 0")
        a("buffer_store_dwordx4 v[252:255], v251, s[88:91], s92 offen")

S_WID = 3
P_AX, P_CR, P_CI, P_HR, P_HI, P_BX, P_WG, P_WU = 16, 18, 20, 22, 24, 26, 28, 30
P_WD, P_GW, P_OUT, P_DBG, P_WS = 32, 34, 36, 38, 40
R_T, R_M1, R_M2, R_O = 44, 48, 52, 56
S_XCD, S_IDX = 4, 5
S_T0, S_M0 = 60, 61
S_SLOT = 62
S_CNT = 63
S_LW = 64
S_KT = 65
S_TMP = 66
S_OBASE = 72
S_JOB = 73
S_ROT = 74
S_K0 = 75
S_KN = 95

V_LANE = 250
V_TMP = 240

def gemm_role(a, tag, NM, LA, S, nK, njobs, pitchT, pitchM, cfg, touch):
    SB = 16384 * (1 + NM)
    DPT = 4 * (1 + NM)
    ntmask = cfg.get("nt", 0)
    flT = " nt" if ntmask & (1 if NM == 1 else 2) else ""
    flM = " nt" if ntmask & (2 if NM == 1 else 4) else ""
    flS = " nt" if ntmask & 32 else ""
    G = nK * njobs
    nsets = 4 if LA >= 2 else 2
    L_loader = f"{tag}_loader"
    L_end = f"{tag}_end"
    a(f"s_cmp_ge_u32 s{S_WID}, 4")
    a(f"s_cbranch_scc1 {L_loader}")

    ACC = 0
    NACC = NM * 4
    FR = 128
    R = 2 + NM * 4
    SETSZ = 8 + NM * 8
    VT = 224
    VT0 = 192
    VM0 = 196
    a.c(f"{tag}: compute wave setup")
    a(f"s_lshr_b32 s{S_TMP}, s{S_WID}, 1")
    a(f"s_and_b32 s{S_TMP+1}, s{S_WID}, 1")
    a(f"v_and_b32 v{V_TMP}, 31, v{V_LANE}")
    a(f"v_lshrrev_b32 v{V_TMP+1}, 5, v{V_LANE}")
    a(f"v_bfe_u32 v{V_TMP+2}, v{V_LANE}, 1, 3")
    a(f"v_xor_b32 v{V_TMP+1}, v{V_TMP+1}, v{V_TMP+2}")
    a(f"v_lshlrev_b32 v{V_TMP+1}, 4, v{V_TMP+1}")
    a(f"v_lshl_add_u32 v{V_TMP}, v{V_TMP}, 7, v{V_TMP+1}")
    a(f"s_lshl_b32 s{S_TMP+2}, s{S_TMP}, 13")
    a(f"v_add_u32 v{VT0}, s{S_TMP+2}, v{V_TMP}")
    for j in range(1, 4):
        a(f"v_xor_b32 v{VT0+j}, {32*j}, v{VT0}")
    a(f"v_bfe_u32 v{V_TMP}, v{V_LANE}, 2, 2")
    a(f"v_lshrrev_b32 v{V_TMP+1}, 5, v{V_LANE}")
    a(f"v_lshl_add_u32 v{V_TMP+1}, v{V_TMP+1}, 3, v{V_TMP}")
    a(f"v_lshlrev_b32 v{V_TMP+1}, 8, v{V_TMP+1}")
    a(f"v_bfe_u32 v{V_TMP+2}, v{V_LANE}, 4, 1")
    a(f"v_lshl_add_u32 v{V_TMP+1}, v{V_TMP+2}, 5, v{V_TMP+1}")
    a(f"v_and_b32 v{V_TMP+2}, 3, v{V_LANE}")
    a(f"v_lshl_add_u32 v{V_TMP+1}, v{V_TMP+2}, 3, v{V_TMP+1}")
    a(f"v_add_u32 v{V_TMP+1}, 16384, v{V_TMP+1}")
    a(f"s_lshl_b32 s{S_TMP+2}, s{S_TMP+1}, 1")
    for mi in range(2):
        a(f"s_add_u32 s{S_TMP+3}, s{S_TMP+2}, {mi}")
        a(f"v_xor_b32 v{V_TMP+2}, s{S_TMP+3}, v{V_TMP}")
        a(f"v_lshl_add_u32 v{VM0+mi}, v{V_TMP+2}, 6, v{V_TMP+1}")
    VO = 236
    a(f"s_mul_i32 s{S_TMP+2}, s{S_TMP}, {TT_STRIDE}")
    a(f"s_lshl_b32 s{S_TMP+3}, s{S_TMP+1}, 13")
    a(f"s_add_u32 s{S_TMP+2}, s{S_TMP+2}, s{S_TMP+3}")
    a(f"v_lshlrev_b32 v{VO}, 4, v{V_LANE}")
    a(f"v_add_u32 v{VO}, s{S_TMP+2}, v{VO}")
    a(f"s_mov_b32 s{S_SLOT}, 0")
    a(f"s_mov_b32 s{S_JOB}, 0")

    def tfrag(st, ni):
        return FR + st * SETSZ + ni * 4
    def mfrag(st, m, mi):
        return FR + st * SETSZ + 8 + (m * 2 + mi) * 4
    def acc(m, mi, ni):
        return ACC + ((m * 2 + mi) * 2 + ni) * 16
    def reads(j, st, aset):
        out = []
        vt = VT + aset * 6
        vm = vt + 4
        for ni in range(2):
            out.append(f"ds_read_b128 {vr(tfrag(st, ni), 4)}, v{vt+j} offset:{ni*4096}")
        for m in range(NM):
            for mi in range(2):
                for q in range(2):
                    out.append(f"ds_read_b64_tr_b16 {vr(mfrag(st, m, mi)+2*q, 2)}, v{vm+mi} offset:{m*16384 + j*4096 + q*1024}")
        return out
    def mfmas(st):
        out = []
        for m in range(NM):
            for mi in range(2):
                for ni in range(2):
                    d = vr(acc(m, mi, ni), 16)
                    out.append(f"v_mfma_f32_32x32x16_bf16 {d}, {vr(mfrag(st, m, mi), 4)}, {vr(tfrag(st, ni), 4)}, {d}")
        return out
    def set_addr(aset):
        out = []
        vt = VT + aset * 6
        for j in range(4):
            out.append(f"v_add_u32 v{vt+j}, s{S_SLOT}, v{VT0+j}")
        for mi in range(2):
            out.append(f"v_add_u32 v{vt+4+mi}, s{S_SLOT}, v{VM0+mi}")
        return out
    def next_slot():
        a(f"s_add_u32 s{S_SLOT}, s{S_SLOT}, {SB}")
        a(f"s_cmp_eq_u32 s{S_SLOT}, {S*SB}")
        a(f"s_cselect_b32 s{S_SLOT}, 0, s{S_SLOT}")
    def interleave(mf, rd, extra=()):
        n = len(mf)
        if cfg.get("nomfma"):
            mf = ["s_nop 0"] * n
        if cfg.get("noreads"):
            rd = []
        rd = list(rd) + list(extra)
        per = (len(rd) + n - 1) // n if rd else 0
        ri = 0
        for i, m in enumerate(mf):
            a(m)
            k = 0
            while ri < len(rd) and k < per:
                a(rd[ri]); ri += 1; k += 1
        while ri < len(rd):
            a(rd[ri]); ri += 1

    if cfg.get("touch", 1):
        touch(a, "init")
    L_job = f"{tag}_job"
    a.label(L_job)
    for i in range(NACC * 16):
        a(f"v_mov_b32 v{ACC+i}, 0")
    for x in set_addr(0):
        a(x)
    a("s_barrier")
    for s_ in range(LA):
        for r_ in reads(s_, s_ % nsets, 0):
            a(r_)
    assert nK % 2 == 0
    a(f"s_mov_b32 s{S_CNT}, {nK//2}")
    L_loop = f"{tag}_cloop"
    L_last = f"{tag}_clast"
    a.label(L_loop)
    def tile(aset, last):
        for j in range(4):
            extra = []
            if j == 0 and not last:
                next_slot()
                extra = set_addr(aset ^ 1)
            if j == 4 - LA and not last:
                a("s_waitcnt lgkmcnt(0)")
                a("s_barrier")
            else:
                if j + LA < 4 or not last:
                    a(f"s_waitcnt lgkmcnt({(LA-1)*R})")
                else:
                    a(f"s_waitcnt lgkmcnt({min(3-j, LA-1)*R})")
            if j + LA < 4:
                rd = reads(j + LA, (j + LA) % nsets, aset)
            elif not last:
                rd = reads((j + LA) % 4, (j + LA) % nsets, aset ^ 1)
            else:
                rd = []
            interleave(mfmas(j % nsets), rd, extra)
    tile(0, False)
    if cfg.get("touch", 1):
        touch(a, "loop0")
    a(f"s_sub_u32 s{S_CNT}, s{S_CNT}, 1")
    a(f"s_cmp_eq_u32 s{S_CNT}, 0")
    a(f"s_cbranch_scc1 {L_last}")
    tile(1, False)
    if cfg.get("touch", 1):
        touch(a, "loop1")
    a(f"s_branch {L_loop}")
    a.label(L_last)
    tile(1, True)
    next_slot()
    a("s_nop 15")
    a("s_nop 3")
    TP = FR
    def store_tile(src, mi, ni):
        for b in range(2):
            t = TP + 32 + ((mi * 2 + ni) * 2 + b) * 4
            for h in range(2):
                g_ = 2 * b + h
                a(f"v_cvt_pk_bf16_f32 v{t+2*h}, v{src+4*g_}, v{src+4*g_+1}")
                a(f"v_cvt_pk_bf16_f32 v{t+2*h+1}, v{src+4*g_+2}, v{src+4*g_+3}")
            a("s_nop 1")
            a(f"v_permlane32_swap_b32 v{t}, v{t+2}")
            a(f"v_permlane32_swap_b32 v{t+1}, v{t+3}")
            off = (mi * 2 + b) * 2048 + ni * 1024
            a(f"buffer_store_dwordx4 {vr(t,4)}, v{VO}, s[{R_O}:{R_O+3}], s{S_OBASE} offen offset:{off & 4095}{flS}" if off < 4096 else
              f"buffer_store_dwordx4 {vr(t,4)}, v{VO+1}, s[{R_O}:{R_O+3}], s{S_OBASE} offen offset:{off - 4096}{flS}")
    a(f"v_add_u32 v{VO+1}, 4096, v{VO}")
    if NM == 1:
        for mi in range(2):
            for ni in range(2):
                store_tile(acc(0, mi, ni), mi, ni)
    else:
        a(f"s_mov_b32 s{S_TMP+4}, 0xbfb8aa3b")
        for mi in range(2):
            for ni in range(2):
                g_ = acc(0, mi, ni); u_ = acc(1, mi, ni)
                for i in range(16):
                    a(f"v_mul_f32 v{g_+i}, s{S_TMP+4}, v{g_+i}")
                for i in range(16):
                    a(f"v_exp_f32 v{g_+i}, v{g_+i}")
                for i in range(16):
                    a(f"v_add_f32 v{g_+i}, 1.0, v{g_+i}")
                for i in range(16):
                    a(f"v_rcp_f32 v{g_+i}, v{g_+i}")
                for i in range(16):
                    a(f"v_mul_f32 v{g_+i}, v{g_+i}, v{u_+i}")
                store_tile(g_, mi, ni)
    if njobs > 1:
        a(f"s_add_u32 s{S_OBASE}, s{S_OBASE}, {2*TT_STRIDE}")
        a(f"s_add_u32 s{S_JOB}, s{S_JOB}, 1")
        a(f"s_cmp_lt_u32 s{S_JOB}, {njobs}")
        a(f"s_cbranch_scc1 {L_job}")
    a(f"s_branch {L_end}")

    a.label(L_loader)
    VLT = 0
    VLM = 4
    a(f"s_sub_u32 s{S_TMP}, s{S_WID}, 4")
    a(f"s_lshl_b32 s{S_LW}, s{S_TMP}, 12")
    a(f"v_lshrrev_b32 v{V_TMP}, 3, v{V_LANE}")
    a(f"s_lshl_b32 s{S_TMP+1}, s{S_TMP}, 5")
    a(f"v_add_u32 v{V_TMP}, s{S_TMP+1}, v{V_TMP}")
    a(f"v_and_b32 v{V_TMP+1}, 7, v{V_LANE}")
    a(f"v_lshrrev_b32 v{V_TMP+2}, 4, v{V_LANE}")
    a(f"v_xor_b32 v{V_TMP+1}, v{V_TMP+1}, v{V_TMP+2}")
    for i in range(4):
        a(f"v_add_u32 v{V_TMP+3}, {8*i}, v{V_TMP}")
        a(f"v_mul_u32_u24 v{V_TMP+3}, {pitchT}, v{V_TMP+3}")
        a(f"v_xor_b32 v{V_TMP+4}, {(i&1)*4}, v{V_TMP+1}")
        a(f"v_lshl_add_u32 v{VLT+i}, v{V_TMP+4}, 4, v{V_TMP+3}")
    a(f"v_lshrrev_b32 v{V_TMP}, 4, v{V_LANE}")
    a(f"v_lshlrev_b32 v{V_TMP+2}, 2, v{V_TMP}")
    a(f"v_and_b32 v{V_TMP+1}, 15, v{V_LANE}")
    a(f"v_xor_b32 v{V_TMP+1}, v{V_TMP+1}, v{V_TMP+2}")
    a(f"s_lshl_b32 s{S_TMP+1}, s{S_TMP}, 4")
    a(f"v_add_u32 v{V_TMP}, s{S_TMP+1}, v{V_TMP}")
    for i in range(4):
        a(f"v_add_u32 v{V_TMP+3}, {4*i}, v{V_TMP}")
        a(f"v_mul_u32_u24 v{V_TMP+3}, {pitchM}, v{V_TMP+3}")
        a(f"v_lshl_add_u32 v{VLM+i}, v{V_TMP+1}, 4, v{V_TMP+3}")
    a(f"s_mov_b32 s{S_SLOT}, 0")
    rot = cfg.get("rot", 0) and not (cfg.get("lat", 0) and NM == 1)
    if rot:
        a(f"s_mov_b32 s{S_KT}, s{S_K0}")
        a(f"s_lshl_b32 s{S_TMP+2}, s{S_KT}, 7")
        a(f"s_add_u32 s{S_T0}, s{S_T0}, s{S_TMP+2}")
        a(f"s_mul_i32 s{S_TMP+2}, s{S_KT}, {64*pitchM}")
        a(f"s_add_u32 s{S_M0}, s{S_M0}, s{S_TMP+2}")
        a(f"s_mov_b32 s{S_KN}, 0")
    else:
        a(f"s_mov_b32 s{S_KT}, 0")
    lat = cfg.get("lat", 0) and NM == 1
    LG = cfg.get("latg", 4)
    if lat:
        a(f"s_mov_b32 s{S_KT}, 0")
        a(f"s_lshr_b32 s{S_K0}, s{S_K0}, 3")
        if LG == 8:
            a(f"s_lshl_b32 s{S_K0}, s{S_K0}, 1")
        if LG == 16:
            a(f"s_lshl_b32 s{S_K0}, s{S_K0}, 2")
        if LG == 2:
            a(f"s_and_b32 s{S_K0}, s{S_K0}, 1")
    def issue():
        if lat:
            a(f"s_add_u32 s{S_TMP+3}, s{S_KT}, s{S_K0}")
            a(f"s_and_b32 s{S_TMP+3}, s{S_TMP+3}, {LG-1}")
            a(f"s_andn2_b32 s{S_TMP+4}, s{S_KT}, {LG-1}")
            a(f"s_or_b32 s{S_TMP+3}, s{S_TMP+3}, s{S_TMP+4}")
            a(f"s_lshl_b32 s{S_TMP+4}, s{S_TMP+3}, 7")
            a(f"s_add_u32 s76, s{S_T0}, s{S_TMP+4}")
            a(f"s_lshl_b32 s{S_TMP+4}, s{S_TMP+3}, 16")
            a(f"s_add_u32 s77, s{S_M0}, s{S_TMP+4}")
            a(f"s_add_u32 s{S_KT}, s{S_KT}, 1")
            a(f"s_add_u32 s{S_TMP+2}, s{S_SLOT}, s{S_LW}")
            for i in range(4):
                a(f"s_add_u32 m0, s{S_TMP+2}, {i*1024}")
                a("s_nop 0")
                a(f"buffer_load_dwordx4 v{VLT+i}, s[{R_T}:{R_T+3}], s76 offen{flT} lds")
            for i in range(4):
                a(f"s_add_u32 m0, s{S_TMP+2}, {16384 + i*1024}")
                a("s_nop 0")
                a(f"buffer_load_dwordx4 v{VLM+i}, s[{R_M1}:{R_M1+3}], s77 offen{flM} lds")
            next_slot()
            return
        a(f"s_add_u32 s{S_TMP+2}, s{S_SLOT}, s{S_LW}")
        for i in range(4):
            if cfg.get("noload") or (cfg.get("noT") and NM == 1): break
            a(f"s_add_u32 m0, s{S_TMP+2}, {i*1024}")
            a("s_nop 0")
            a(f"buffer_load_dwordx4 v{VLT+i}, s[{R_T}:{R_T+3}], s{S_T0} offen{flT} lds")
        for m in range(NM):
            if cfg.get("noload") or (cfg.get("noM") and NM == 1): break
            rm = R_M1 if m == 0 else R_M2
            for i in range(4):
                a(f"s_add_u32 m0, s{S_TMP+2}, {16384*(1+m) + i*1024}")
                a("s_nop 0")
                a(f"buffer_load_dwordx4 v{VLM+i}, s[{rm}:{rm+3}], s{S_M0} offen{flM} lds")
        next_slot()
        a(f"s_add_u32 s{S_T0}, s{S_T0}, 128")
        a(f"s_add_u32 s{S_M0}, s{S_M0}, {64*pitchM}")
        if rot:
            lab = a.newlabel(f"{tag}_nj")
            a(f"s_add_u32 s{S_KT}, s{S_KT}, 1")
            a(f"s_cmp_lg_u32 s{S_KT}, {nK}")
            a(f"s_cbranch_scc1 {lab}")
            a(f"s_mov_b32 s{S_KT}, 0")
            a(f"s_sub_u32 s{S_T0}, s{S_T0}, {nK*128}")
            a(f"s_sub_u32 s{S_M0}, s{S_M0}, {nK*64*pitchM}")
            a.label(lab)
            if njobs > 1:
                lab = a.newlabel(f"{tag}_nk")
                a(f"s_add_u32 s{S_KN}, s{S_KN}, 1")
                a(f"s_cmp_lg_u32 s{S_KN}, {nK}")
                a(f"s_cbranch_scc1 {lab}")
                a(f"s_add_u32 s{S_T0}, s{S_T0}, {128*pitchT}")
                a.label(lab)
        elif njobs > 1:
            lab = a.newlabel(f"{tag}_nj")
            a(f"s_add_u32 s{S_KT}, s{S_KT}, 1")
            a(f"s_cmp_lg_u32 s{S_KT}, {nK}")
            a(f"s_cbranch_scc1 {lab}")
            a(f"s_mov_b32 s{S_KT}, 0")
            a(f"s_add_u32 s{S_T0}, s{S_T0}, {128*pitchT - nK*128}")
            a(f"s_sub_u32 s{S_M0}, s{S_M0}, {nK*64*pitchM}")
            a.label(lab)
    def stamp():
        if cfg.get("stamp"):
            a("s_memtime s[76:77]")
            a("s_waitcnt lgkmcnt(0)")
            a("s_sub_u32 s76, s76, s82")
            a("s_mov_b32 m0, s94")
            a("s_nop 3")
            a("v_writelane_b32 v100, s76, m0")
            a("s_add_u32 s94, s94, 1")
    a("s_mov_b32 s94, 0")
    if cfg.get("pair", 1) and NM == 1 and njobs == 1 and not rot:
        def issT(slot_expr_sgpr, soff):
            for i in range(4):
                a(f"s_add_u32 m0, s{slot_expr_sgpr}, {i*1024}")
                a("s_nop 0")
                a(f"buffer_load_dwordx4 v{VLT+i}, s[{R_T}:{R_T+3}], s{soff} offen{flT} lds")
        def issM(slot_expr_sgpr, soff):
            for i in range(4):
                a(f"s_add_u32 m0, s{slot_expr_sgpr}, {16384 + i*1024}")
                a("s_nop 0")
                a(f"buffer_load_dwordx4 v{VLM+i}, s[{R_M1}:{R_M1+3}], s{soff} offen{flM} lds")
        SA, SBs, ST1, SM1 = S_TMP+2, S_TMP+3, S_TMP+4, S_TMP+5
        stamp()
        for t in range(3):
            a(f"s_add_u32 s{SA}, s{S_LW}, {t*SB}")
            a(f"s_add_u32 s{ST1}, s{S_T0}, {t*128}")
            issT(SA, ST1)
        for t in range(3):
            a(f"s_add_u32 s{SA}, s{S_LW}, {t*SB}")
            a(f"s_add_u32 s{SM1}, s{S_M0}, {t*64*pitchM}")
            issM(SA, SM1)
        stamp()
        a(f"s_add_u32 s{S_T0}, s{S_T0}, {3*128}")
        a(f"s_add_u32 s{S_M0}, s{S_M0}, {3*64*pitchM}")
        a(f"s_mov_b32 s{S_SLOT}, {3*SB}")
        a("s_waitcnt vmcnt(8)")
        a("s_barrier")
        stamp()
        a("s_waitcnt vmcnt(4)")
        a("s_barrier")
        stamp()
        def group(two):
            a(f"s_add_u32 s{SA}, s{S_SLOT}, s{S_LW}")
            next_slot()
            a(f"s_add_u32 s{SBs}, s{S_SLOT}, s{S_LW}")
            a(f"s_add_u32 s{ST1}, s{S_T0}, 128")
            a(f"s_add_u32 s{SM1}, s{S_M0}, {64*pitchM}")
            issT(SA, S_T0)
            if two: issT(SBs, ST1)
            issM(SA, S_M0)
            if two: issM(SBs, SM1)
            next_slot()
            a(f"s_add_u32 s{S_T0}, s{S_T0}, 256")
            a(f"s_add_u32 s{S_M0}, s{S_M0}, {128*pitchM}")
        group(True)
        a("s_waitcnt vmcnt(16)")
        a("s_barrier")
        stamp()
        a(f"s_mov_b32 s{S_CNT}, 13")
        L_ll = f"{tag}_lloop"
        a.label(L_ll)
        a("s_waitcnt vmcnt(4)")
        a("s_barrier")
        stamp()
        group(True)
        a("s_waitcnt vmcnt(16)")
        a("s_barrier")
        stamp()
        a(f"s_sub_u32 s{S_CNT}, s{S_CNT}, 1")
        a(f"s_cmp_lg_u32 s{S_CNT}, 0")
        a(f"s_cbranch_scc1 {L_ll}")
        a("s_waitcnt vmcnt(4)")
        a("s_barrier")
        stamp()
        group(False)
        a("s_waitcnt vmcnt(8)")
        a("s_barrier")
        stamp()
        a("s_waitcnt vmcnt(0)")
        a("s_barrier")
        stamp()
    else:
        stamp()
        for g in range(S - 1):
            issue()
        stamp()
        a(f"s_mov_b32 s{S_CNT}, {G-(S-1)}")
        L_ll = f"{tag}_lloop"
        a.label(L_ll)
        a(f"s_waitcnt vmcnt({(S-2)*DPT})")
        a("s_barrier")
        stamp()
        issue()
        a(f"s_sub_u32 s{S_CNT}, s{S_CNT}, 1")
        a(f"s_cmp_lg_u32 s{S_CNT}, 0")
        a(f"s_cbranch_scc1 {L_ll}")
        for g in range(G - (S - 1), G):
            a(f"s_waitcnt vmcnt({(G-1-g)*DPT})")
            a("s_barrier")
            stamp()
    if cfg.get("stamp"):
        a(f"s_add_u32 s88, s{P_WS}, {PROF + 0x40000:#x}")
        a(f"s_addc_u32 s89, s{P_WS+1}, 0")
        a("s_mov_b32 s90, 0x100000")
        a("s_mov_b32 s91, 0x00020000")
        a("s_lshl_b32 s92, s2, 2")
        a(f"s_add_u32 s92, s92, s{S_TMP}")
        a("s_lshl_b32 s92, s92, 8")
        a(f"v_lshlrev_b32 v101, 2, v{V_LANE}")
        a("buffer_store_dword v100, v101, s[88:91], s92 offen")
    a.label(L_end)
    prof_end(a, cfg, P_WS, S_WID, 0)
    a("s_endpgm")

def aux_role(a, cfg):
    a.c("AUX: gate, H relayout, Wd transpose (all loads issued up front)")
    AW = S_TMP
    a(f"s_sub_u32 s{S_TMP+1}, s{S_IDX}, 30")
    a(f"s_lshl_b32 s{S_TMP+1}, s{S_TMP+1}, 3")
    a(f"s_add_u32 s{S_TMP+1}, s{S_TMP+1}, s{S_XCD}")
    a(f"s_lshl_b32 s{AW}, s{S_TMP+1}, 3")
    a(f"s_add_u32 s{AW}, s{AW}, s{S_WID}")
    RX, RG, RW, RH, RD = R_T, R_M1, R_M2, R_O, 96
    srd(a, RX, P_AX, 2048*512*2)
    srd(a, RG, P_GW, 1024)
    srd(a, RW, P_WS, GATE + GATE_SIZE)
    srd(a, RD, P_WD, 1792*512*2)
    a(f"s_bitcmp1_b32 s{AW}, 3")
    a(f"s_cselect_b32 s{S_TMP+2}, s{P_HI}, s{P_HR}")
    a(f"s_cselect_b32 s{S_TMP+3}, s{P_HI+1}, s{P_HR+1}")
    a(f"s_cselect_b32 s{S_M0}, 0x80008000, 0")
    srd(a, RH, S_TMP+2, 512*512*2)
    a(f"v_lshlrev_b32 v1, 2, v{V_LANE}")
    a(f"s_mul_i32 s{S_TMP+1}, s{AW}, 7")
    for i in range(7):
        a(f"s_add_u32 s{S_TMP+4}, s{S_TMP+1}, {i}")
        a(f"s_lshr_b32 s{S_TMP+2}, s{S_TMP+4}, 2")
        a(f"s_and_b32 s{S_TMP+3}, s{S_TMP+4}, 3")
        a(f"s_lshl_b32 s{S_T0}, s{S_TMP+2}, 13")
        a(f"s_lshl_b32 s{S_CNT}, s{S_TMP+3}, 8")
        a(f"s_add_u32 s{S_T0}, s{S_T0}, s{S_CNT}")
        a(f"s_add_u32 s{S_CNT}, s{S_T0}, 4096")
        for ff in range(8):
            o = ff * 1024
            a(f"buffer_load_dword v{64+8*i+ff}, v1, s[{RD}:{RD+3}], s{S_T0 if o < 4096 else S_CNT} offen offset:{o & 4095}")
    a(f"s_lshr_b32 s{S_TMP+1}, s{AW}, 4")
    a(f"s_and_b32 s{S_TMP+4}, s{AW}, 15")
    a(f"v_and_b32 v5, 31, v{V_LANE}")
    a(f"s_lshl_b32 s{S_TMP+6}, s{S_TMP+1}, 6")
    a(f"v_add_u32 v5, s{S_TMP+6}, v5")
    a(f"v_lshlrev_b32 v5, 10, v5")
    a(f"v_lshrrev_b32 v6, 5, v{V_LANE}")
    a(f"v_lshl_add_u32 v5, v6, 4, v5")
    a(f"v_add_u32 v6, 32768, v5")
    a(f"s_and_b32 s{S_TMP+6}, s{S_TMP+4}, 7")
    a(f"s_lshl_b32 s{S_TMP+6}, s{S_TMP+6}, 7")
    for i in range(8):
        a(f"buffer_load_dwordx4 {vr(128+4*i,4)}, v{6 if i & 1 else 5}, s[{RH}:{RH+3}], s{S_TMP+6} offen offset:{(i >> 1) * 32}")
    a(f"s_mul_i32 s{S_SLOT}, s{S_TMP+1}, {TT_STRIDE}")
    a(f"s_lshl_b32 s{S_TMP+4}, s{S_TMP+4}, 13")
    a(f"s_add_u32 s{S_SLOT}, s{S_SLOT}, s{S_TMP+4}")
    a(f"s_add_u32 s{S_SLOT}, s{S_SLOT}, {B2F:#x}")
    a(f"v_lshrrev_b32 v7, 2, v{V_LANE}")
    a(f"s_lshl_b32 s{S_TMP+1}, s{AW}, 4")
    a(f"v_add_u32 v7, s{S_TMP+1}, v7")
    a(f"v_and_b32 v8, 3, v{V_LANE}")
    a(f"v_lshlrev_b32 v8, 8, v8")
    a(f"v_lshl_add_u32 v9, v7, 10, v8")
    for i in range(16):
        a(f"buffer_load_dwordx4 {vr(160+4*i,4)}, v9, s[{RX}:{RX+3}], 0 offen offset:{i*16}")
    for i in range(12):
        a(f"buffer_load_dwordx4 {vr(16+4*i,4)}, v8, s[{RG}:{RG+3}], 0 offen offset:{i*16}")
    for i in range(12, 16):
        a(f"buffer_load_dwordx4 {vr(224+4*(i-12),4)}, v8, s[{RG}:{RG+3}], 0 offen offset:{i*16}")
    a(f"s_mov_b32 s{S_TMP+5}, 0x05040100")
    a(f"s_mov_b32 s{S_TMP+6}, 0x07060302")
    a(f"v_lshrrev_b32 v2, 5, v{V_LANE}")
    a(f"v_mul_u32_u24 v2, {TT_STRIDE}, v2")
    a(f"v_bfe_u32 v3, v{V_LANE}, 4, 1")
    a(f"v_lshl_add_u32 v2, v3, 10, v2")
    a(f"v_and_b32 v3, 15, v{V_LANE}")
    a(f"v_lshl_add_u32 v2, v3, 5, v2")
    a(f"s_mul_i32 s{S_TMP+1}, s{AW}, 7")
    a("s_waitcnt vmcnt(40)")
    for i in range(7):
        a(f"s_add_u32 s{S_TMP+4}, s{S_TMP+1}, {i}")
        a(f"s_lshr_b32 s{S_TMP+2}, s{S_TMP+4}, 2")
        a(f"s_and_b32 s{S_TMP+3}, s{S_TMP+4}, 3")
        a(f"s_mul_i32 s{S_T0}, s{S_TMP+3}, {2*TT_STRIDE}")
        a(f"s_lshr_b32 s{S_CNT}, s{S_TMP+2}, 1")
        a(f"s_lshl_b32 s{S_CNT}, s{S_CNT}, 11")
        a(f"s_add_u32 s{S_T0}, s{S_T0}, s{S_CNT}")
        a(f"s_and_b32 s{S_CNT}, s{S_TMP+2}, 1")
        a(f"s_lshl_b32 s{S_CNT}, s{S_CNT}, 9")
        a(f"s_add_u32 s{S_T0}, s{S_T0}, s{S_CNT}")
        a(f"s_add_u32 s{S_T0}, s{S_T0}, {B2F + 64*2048:#x}")
        b = 64 + 8 * i
        for p in range(4):
            a(f"v_perm_b32 v{10+p}, v{b+2*p+1}, v{b+2*p}, s{S_TMP+6}")
        for p in range(4):
            a(f"v_perm_b32 v{b+p}, v{b+2*p+1}, v{b+2*p}, s{S_TMP+5}")
        for p in range(4):
            a(f"v_mov_b32 v{b+4+p}, v{10+p}")
        a(f"buffer_store_dwordx4 {vr(b,4)}, v2, s[{RW}:{RW+3}], s{S_T0} offen")
        a(f"buffer_store_dwordx4 {vr(b+4,4)}, v2, s[{RW}:{RW+3}], s{S_T0} offen offset:16")
    a("s_waitcnt vmcnt(46)")
    a(f"v_lshlrev_b32 v3, 4, v{V_LANE}")
    a(f"v_add_u32 v4, 4096, v3")
    for i in range(32):
        a(f"v_xor_b32 v{128+i}, s{S_M0}, v{128+i}")
    for i in range(8):
        off = i * 1024
        a(f"buffer_store_dwordx4 {vr(128+4*i,4)}, v{3 if off < 4096 else 4}, s[{RW}:{RW+3}], s{S_SLOT} offen offset:{off & 4095}")
    a("s_waitcnt vmcnt(22)")
    a("v_mov_b32 v10, 0")
    for i in range(16):
        wb = 16 + 4 * i if i < 12 else 224 + 4 * (i - 12)
        for d in range(4):
            a(f"v_dot2_f32_bf16 v10, v{160+4*i+d}, v{wb+d}, v10")
    a("s_nop 3")
    a("v_add_f32 v10, v10, v10 quad_perm:[1,0,3,2] row_mask:0xf bank_mask:0xf")
    a("s_nop 1")
    a("v_add_f32 v10, v10, v10 quad_perm:[2,3,0,1] row_mask:0xf bank_mask:0xf")
    a("v_mul_f32 v10, 0xbfb8aa3b, v10")
    a("v_exp_f32 v10, v10")
    a("s_nop 0")
    a("v_add_f32 v10, 1.0, v10")
    a("v_rcp_f32 v10, v10")
    a(f"v_lshlrev_b32 v11, 2, v7")
    a(f"v_add_u32 v11, {GATE:#x}, v11")
    a("s_nop 0")
    a(f"buffer_store_dword v10, v11, s[{RW}:{RW+3}], 0 offen")
    prof_end(a, cfg, P_WS, S_WID, 0)
    a("s_endpgm")

def stage1(a, cfg):
    a(f".globl {K1}")
    a(".p2align 8")
    a(f".type {K1},@function")
    a.label(K1)
    a("s_cmp_ge_u32 s2, 256")
    a("s_cbranch_scc1 S1_exit")
    prof_start(a, cfg)
    a("s_load_dwordx16 s[16:31], s[0:1], 0")
    a("s_load_dwordx8 s[32:39], s[0:1], 64")
    a("s_load_dwordx2 s[40:41], s[0:1], 96")
    a("v_lshrrev_b32 v1, 6, v0")
    a(f"v_and_b32 v{V_LANE}, 63, v0")
    a(f"v_readfirstlane_b32 s{S_WID}, v1")
    a(f"s_and_b32 s{S_XCD}, s2, 7")
    a(f"s_lshr_b32 s{S_IDX}, s2, 3")
    a("s_waitcnt lgkmcnt(0)")
    if cfg.get("onlyA"):
        a(f"s_cmp_ge_u32 s{S_IDX}, 16")
        a("s_cbranch_scc1 S1_exit")
    a(f"s_cmp_ge_u32 s{S_IDX}, 30")
    a("s_cbranch_scc1 S1_aux")
    srd(a, R_O, P_WS, A2F_SIZE)
    a(f"s_cmp_ge_u32 s{S_IDX}, 16")
    a("s_cbranch_scc1 S1_typeB")
    a(f"s_lshl_b32 s{S_TMP}, s{S_XCD}, 2")
    a(f"s_lshr_b32 s{S_TMP+1}, s{S_IDX}, 2")
    a(f"s_add_u32 s{S_TMP}, s{S_TMP}, s{S_TMP+1}")
    a(f"s_and_b32 s{S_TMP+1}, s{S_IDX}, 3")
    a(f"s_mov_b32 s{S_ROT}, s{S_TMP}")
    a(f"s_lshr_b32 s{S_K0}, s{S_IDX}, 2")
    a(f"s_add_u32 s{S_K0}, s{S_K0}, s{S_TMP+1}")
    a(f"s_and_b32 s{S_K0}, s{S_K0}, 3")
    a(f"s_lshl_b32 s{S_K0}, s{S_K0}, 3")
    a(f"s_cmp_ge_u32 s{S_TMP}, 16")
    a(f"s_cselect_b32 s{S_TMP+2}, s{P_CI}, s{P_CR}")
    a(f"s_cselect_b32 s{S_TMP+3}, s{P_CI+1}, s{P_CR+1}")
    a(f"s_cselect_b32 s{S_TMP+4}, 32, 0")
    srd(a, R_T, S_TMP+2, 2048*2048*2)
    srd(a, R_M1, P_AX, 2048*512*2)
    a(f"s_and_b32 s{S_TMP}, s{S_TMP}, 15")
    a(f"s_lshl_b32 s{S_T0}, s{S_TMP}, 19")
    a(f"s_lshl_b32 s{S_M0}, s{S_TMP+1}, 8")
    a(f"s_mul_i32 s{S_OBASE}, s{S_TMP}, {2*TT_STRIDE}")
    a(f"s_lshl_b32 s{S_TMP+1}, s{S_TMP+1}, 3")
    a(f"s_add_u32 s{S_TMP+1}, s{S_TMP+1}, s{S_TMP+4}")
    a(f"s_lshl_b32 s{S_TMP+1}, s{S_TMP+1}, 11")
    a(f"s_add_u32 s{S_OBASE}, s{S_OBASE}, s{S_TMP+1}")
    SEC = cfg.get("sec", 128)
    VJ = 239
    PDC = cfg.get("pdc", 2)
    R_P = 60 + 20
    R_P = 96
    S_PO, S_PC, S_PS = 76, 77, 78
    VP = 238
    def touch_step(a):
        lab = a.newlabel("Tt")
        a(f"s_cmp_eq_u32 s{S_PC}, 0")
        a(f"s_cbranch_scc1 {lab}")
        a(f"buffer_load_dword v{VJ}, v{VP}, s[{R_P}:{R_P+3}], s{S_PO} offen{' nt' if cfg.get('nt',0) & 8 else ''}")
        a(f"s_add_u32 s{S_PO}, s{S_PO}, s{S_PS}")
        a(f"s_sub_u32 s{S_PC}, s{S_PC}, 1")
        a.label(lab)
    CH = cfg.get("ch", 8)
    TPH = cfg.get("tph", 0)
    def touchX(a, where):
        if where != "init":
            return
        a(f"v_lshrrev_b32 v{V_TMP}, 3, v{V_LANE}")
        a(f"s_lshl_b32 s{S_TMP+2}, s{S_IDX}, 3")
        a(f"v_add_u32 v{V_TMP+3}, s{S_TMP+2}, v{V_TMP}")
        a(f"v_lshlrev_b32 v{V_TMP+3}, 10, v{V_TMP+3}")
        a(f"v_and_b32 v{V_TMP+2}, 7, v{V_LANE}")
        a(f"v_lshl_add_u32 v{V_TMP+3}, v{V_TMP+2}, 7, v{V_TMP+3}")
        a(f"s_lshl_b32 s{S_TMP+2}, s{S_WID}, 17")
        for c in range(4):
            a(f"buffer_load_dword v{VJ}, v{V_TMP+3}, s[{R_M1}:{R_M1+3}], s{S_TMP+2} offen")
            if c < 3:
                a(f"s_add_u32 s{S_TMP+2}, s{S_TMP+2}, {4*128*1024}")
    PDP = cfg.get("pdp", 2)
    def touchXC(a, where):
        if where == "init":
            touchX(a, where)
            a(f"v_bfe_u32 v{V_TMP}, v{V_LANE}, 1, 3")
            a(f"s_lshr_b32 s{S_TMP+2}, s{S_M0}, 3")
            a(f"s_lshl_b32 s{S_TMP+3}, s{S_WID}, 3")
            a(f"s_add_u32 s{S_TMP+2}, s{S_TMP+2}, s{S_TMP+3}")
            a(f"v_add_u32 v{V_TMP+1}, s{S_TMP+2}, v{V_TMP}")
            a(f"v_lshlrev_b32 v{V_TMP+1}, 12, v{V_TMP+1}")
            a(f"v_and_b32 v{V_TMP+2}, 1, v{V_LANE}")
            a(f"v_lshl_add_u32 v{VP}, v{V_TMP+2}, 7, v{V_TMP+1}")
            a(f"s_add_u32 s{S_PO}, s{S_T0}, {3*128}")
            a(f"s_mov_b32 s{S_PC}, 15")
            for c in range(PDP):
                tstep(a)
        elif where == "loop0":
            tstep(a)
    def tstep(a):
        lab = a.newlabel("Tc")
        a(f"s_cmp_eq_u32 s{S_PC}, 0")
        a(f"s_cbranch_scc1 {lab}")
        a(f"buffer_load_dword v{VJ}, v{VP}, s[{R_T}:{R_T+3}], s{S_PO} offen nt")
        a(f"s_add_u32 s{S_PO}, s{S_PO}, 256")
        a(f"s_sub_u32 s{S_PC}, s{S_PC}, 1")
        a.label(lab)
    def touchA(a, where):
        NI = CH // 4
        def step(a):
            lab = a.newlabel("Tt")
            a(f"s_cmp_eq_u32 s{S_PC}, 0")
            a(f"s_cbranch_scc1 {lab}")
            for i in range(NI):
                a(f"buffer_load_dword v{VJ}, v{VP}, s[{R_P}:{R_P+3}], s{S_PO} offen{' nt' if cfg.get('nt',0) & 8 else ''}")
                a(f"s_add_u32 s{S_PO}, s{S_PO}, s{S_PS}")
            a(f"s_add_u32 s{S_PO}, s{S_PO}, s{S_PS+1}")
            a(f"s_sub_u32 s{S_PC}, s{S_PC}, 1")
            a.label(lab)
        if where == "init":
            lab = a.newlabel("TAi")
            a(f"s_cmp_ge_u32 s{S_WID}, 2")
            a(f"s_cbranch_scc1 {lab}")
            for i in range(4):
                a(f"s_mov_b32 s{R_P+i}, s{R_T+i}")
            a(f"v_lshrrev_b32 v{V_TMP}, 2, v{V_LANE}")
            a(f"s_lshr_b32 s{S_TMP+2}, s{S_M0}, 3")
            a(f"s_lshl_b32 s{S_TMP+3}, s{S_WID}, 4")
            a(f"s_add_u32 s{S_TMP+2}, s{S_TMP+2}, s{S_TMP+3}")
            a(f"v_add_u32 v{V_TMP+1}, s{S_TMP+2}, v{V_TMP}")
            a(f"v_lshlrev_b32 v{V_TMP+1}, 12, v{V_TMP+1}")
            a(f"v_and_b32 v{V_TMP+2}, 3, v{V_LANE}")
            a(f"v_lshl_add_u32 v{VP}, v{V_TMP+2}, 7, v{V_TMP+1}")
            a(f"s_mov_b32 s{S_PO}, s{S_T0}")
            a(f"s_mov_b32 s{S_PS}, 512")
            a(f"s_mov_b32 s{S_PS+1}, 0")
            a(f"s_branch {lab}e")
            a.label(lab)
            for i in range(4):
                a(f"s_mov_b32 s{R_P+i}, s{R_M1+i}")
            a(f"s_lshl_b32 s{S_TMP+2}, s{S_IDX}, 7")
            a(f"s_sub_u32 s{S_TMP+3}, s{S_WID}, 2")
            a(f"s_lshl_b32 s{S_TMP+3}, s{S_TMP+3}, 6")
            a(f"s_add_u32 s{S_TMP+2}, s{S_TMP+2}, s{S_TMP+3}")
            a(f"v_add_u32 v{V_TMP}, s{S_TMP+2}, v{V_LANE}")
            a(f"v_lshlrev_b32 v{VP}, 7, v{V_TMP}")
            a(f"s_mov_b32 s{S_PO}, 0")
            a(f"s_mov_b32 s{S_PS}, {256*1024}")
            a(f"s_mov_b32 s{S_PS+1}, 0")
            a.label(lab + "e")
            a(f"s_mov_b32 s{S_PC}, {32//CH}")
            for c in range(PDC):
                step(a)
        elif where == "loop0":
            lab = a.newlabel("TAt")
            a(f"s_sub_u32 s{S_TMP+2}, 16, s{S_CNT}")
            a(f"s_and_b32 s{S_TMP+2}, s{S_TMP+2}, {CH//2-1}")
            a(f"s_cmp_lg_u32 s{S_TMP+2}, {TPH}")
            a(f"s_cbranch_scc1 {lab}")
            step(a)
            a.label(lab)
    gemm_role(a, "TA", NM=1, LA=cfg.get("LA_A", 2), S=4, nK=32, njobs=1, pitchT=4096, pitchM=1024, cfg=cfg, touch=(touchXC if cfg.get('xhot') == 2 else touchX if cfg.get('xhot') else touchA))
    a.label("S1_typeB")
    srd(a, R_T, P_AX, 2048*512*2)
    srd(a, R_M1, P_WG, 512*1792*2)
    srd(a, R_M2, P_WU, 512*1792*2)
    a(f"s_sub_u32 s{S_TMP+1}, s{S_IDX}, 16")
    a(f"s_lshl_b32 s{S_TMP+1}, s{S_TMP+1}, 1")
    a(f"s_mul_i32 s{S_TMP+2}, s{S_XCD}, 28")
    a(f"s_add_u32 s{S_TMP+2}, s{S_TMP+2}, s{S_TMP+1}")
    a(f"s_lshr_b32 s{S_TMP+1}, s{S_TMP+2}, 4")
    a(f"s_and_b32 s{S_TMP+2}, s{S_TMP+2}, 15")
    a(f"s_mov_b32 s{S_ROT}, s{S_TMP+2}")
    a(f"s_lshr_b32 s{S_K0}, s{S_TMP+2}, 1")
    if cfg.get("cbmul", 0):
        a(f"s_mul_i32 s{S_TMP+3}, s{S_TMP+1}, {cfg['cbmul']}")
        a(f"s_add_u32 s{S_K0}, s{S_K0}, s{S_TMP+3}")
        a(f"s_and_b32 s{S_K0}, s{S_K0}, 7")
    a(f"s_lshl_b32 s{S_T0}, s{S_TMP+2}, 17")
    a(f"s_lshl_b32 s{S_M0}, s{S_TMP+1}, 8")
    a(f"s_mul_i32 s{S_OBASE}, s{S_TMP+2}, {2*TT_STRIDE}")
    a(f"s_lshl_b32 s{S_TMP+1}, s{S_TMP+1}, 3")
    a(f"s_add_u32 s{S_TMP+1}, s{S_TMP+1}, 64")
    a(f"s_lshl_b32 s{S_TMP+1}, s{S_TMP+1}, 11")
    a(f"s_add_u32 s{S_OBASE}, s{S_OBASE}, s{S_TMP+1}")
    PDB = cfg.get("pdb", 3)
    def touchB(a, where):
        if where == "init":
            lab = a.newlabel("TBi")
            a(f"s_cmp_ge_u32 s{S_WID}, 2")
            a(f"s_cbranch_scc1 {lab}")
            for i in range(4):
                a(f"s_mov_b32 s{R_P+i}, s{R_T+i}")
            a(f"s_lshl_b32 s{S_TMP+2}, s{S_WID}, 6")
            a(f"v_add_u32 v{V_TMP}, s{S_TMP+2}, v{V_LANE}")
            a(f"v_lshlrev_b32 v{VP}, 10, v{V_TMP}")
            a(f"s_add_u32 s{S_PO}, s{S_T0}, 256")
            a(f"s_mov_b32 s{S_PS}, 128")
            a(f"s_mov_b32 s{S_PC}, 14")
            a(f"s_branch {lab}e")
            a.label(lab)
            a(f"s_cmp_eq_u32 s{S_WID}, 2")
            for i in range(4):
                a(f"s_cselect_b32 s{R_P+i}, s{R_M1+i}, s{R_M2+i}")
            a(f"s_lshr_b32 s{S_TMP+2}, s{S_ROT}, 1")
            a(f"s_lshl_b32 s{S_TMP+2}, s{S_TMP+2}, 3")
            a(f"v_bfe_u32 v{V_TMP}, v{V_LANE}, 1, 3")
            a(f"v_add_u32 v{V_TMP}, s{S_TMP+2}, v{V_TMP}")
            a(f"v_mul_u32_u24 v{V_TMP}, 3584, v{V_TMP}")
            a(f"v_and_b32 v{V_TMP+1}, 1, v{V_LANE}")
            a(f"v_lshl_add_u32 v{VP}, v{V_TMP+1}, 7, v{V_TMP}")
            a(f"s_add_u32 s{S_PO}, s{S_M0}, {2*64*3584}")
            a(f"s_mov_b32 s{S_PS}, {64*3584}")
            a(f"s_mov_b32 s{S_PC}, 6")
            a.label(lab + "e")
            for c in range(PDB):
                touch_step(a)
        else:
            lab = a.newlabel("TBj")
            a(f"s_cmp_lg_u32 s{S_PC}, 8")
            a(f"s_cbranch_scc1 {lab}")
            a(f"s_add_u32 s{S_PO}, s{S_PO}, {131072 - 1024}")
            a.label(lab)
            touch_step(a)
    gemm_role(a, "TB", NM=2, LA=1, S=3, nK=8, njobs=2, pitchT=1024, pitchM=3584, cfg=cfg, touch=((lambda a, w: None) if cfg.get('xhot') else touchB))
    a.label("S1_aux")
    aux_role(a, cfg)
    a.label("S1_exit")
    a("s_endpgm")

def stage2(a, cfg):
    D = cfg.get("D2", 8)
    a(f".globl {K2}")
    a(".p2align 8")
    a(f".type {K2},@function")
    a.label(K2)
    a("s_cmp_ge_u32 s2, 256")
    a("s_cbranch_scc1 S2_exit")
    prof_start(a, cfg)
    a("s_load_dwordx2 s[4:5], s[0:1], 80")
    a("s_load_dwordx2 s[6:7], s[0:1], 96")
    a("v_lshrrev_b32 v1, 6, v0")
    a("v_and_b32 v200, 63, v0")
    a("v_readfirstlane_b32 s3, v1")
    a("s_and_b32 s8, s2, 7")
    a("s_lshr_b32 s9, s2, 3")
    a("s_lshl_b32 s10, s8, 2")
    a("s_lshr_b32 s11, s9, 3")
    a("s_add_u32 s10, s10, s11")
    a("s_and_b32 s11, s9, 7")
    a("s_waitcnt lgkmcnt(0)")
    srd(a, 12, 6, A2F_SIZE)
    srd(a, 16, 6, B2F_SIZE, off=B2F)
    srd(a, 20, 6, GATE_SIZE, off=GATE)
    srd(a, 24, 4, 2048*512*2)
    a("v_lshlrev_b32 v201, 4, v200")
    a("v_and_b32 v202, 31, v200")
    a("s_lshl_b32 s28, s10, 6")
    a("v_add_u32 v202, s28, v202")
    a("v_lshlrev_b32 v202, 2, v202")
    a("buffer_load_dword v204, v202, s[20:23], 0 offen")
    a("buffer_load_dword v205, v202, s[20:23], 0 offen offset:128")
    a(f"s_mul_i32 s28, s10, {TT_STRIDE}")
    a(f"s_mul_i32 s29, s11, {TT_STRIDE}")
    a("s_lshl_b32 s30, s3, 15")
    a(f"s_mul_i32 s31, s3, {28*2048}")
    a(f"s_add_u32 s31, s31, {64*2048}")
    a("s_add_u32 s32, s28, s30")
    a("s_add_u32 s33, s29, s30")
    a("s_add_u32 s34, s28, s31")
    a("s_add_u32 s35, s29, s31")
    if cfg.get("touch2", 1):
        SEC = cfg.get("sec", 128)
        srd(a, 36, 6, GATE)
        a("v_lshlrev_b32 v203, 7, v200")
        a("s_lshl_b32 s40, s9, 2")
        a("s_add_u32 s40, s40, s3")
        for i in range(5):
            lab = a.newlabel("S2t")
            a(f"s_add_u32 s41, s40, {128*i}")
            if i == 4:
                a("s_cmp_ge_u32 s41, 528")
                a(f"s_cbranch_scc1 {lab}")
            a("s_lshr_b32 s42, s41, 4")
            a("s_and_b32 s43, s41, 15")
            a("s_sub_u32 s44, s41, 192")
            a(f"s_mul_hi_u32 s45, s44, {(2**32 + 27)//28}")
            a("s_mul_i32 s46, s45, 28")
            a("s_sub_u32 s46, s44, s46")
            a("s_add_u32 s46, s46, 16")
            a("s_cmp_lt_u32 s41, 192")
            a("s_cselect_b32 s42, s42, s45")
            a("s_cselect_b32 s43, s43, s46")
            a("s_lshl_b32 s44, s8, 2")
            a("s_cmp_lt_u32 s42, 4")
            a("s_cselect_b32 s44, s44, 28")
            a("s_add_u32 s44, s44, s42")
            a(f"s_mul_i32 s44, s44, {TT_STRIDE}")
            a("s_lshl_b32 s43, s43, 13")
            a("s_add_u32 s44, s44, s43")
            for h in range(128 // SEC):
                a(f"buffer_load_dword v207, v203, s[36:39], s44 offen offset:{h*64}")
            a.label(lab)
    for i in range(128):
        a(f"v_mov_b32 v{i}, 0")
    NS = 44
    rot2 = cfg.get("rot2", 1)
    a("s_lshr_b32 s38, s9, 3")
    if rot2:
        a("s_lshl_b32 s36, s11, 1")
        a("s_lshl_b32 s39, s38, 2")
        a("s_add_u32 s36, s36, s39")
        a("s_and_b32 s36, s36, 15")
        a("s_lshl_b32 s36, s36, 11")
        a("s_mul_i32 s37, s11, 7")
        a("s_lshr_b32 s37, s37, 1")
        a("s_mul_i32 s39, s38, 7")
        a("s_add_u32 s37, s37, s39")
        a("s_cmp_ge_u32 s37, 28")
        a("s_cselect_b32 s39, 28, 0")
        a("s_sub_u32 s37, s37, s39")
        a("s_lshl_b32 s37, s37, 11")
    else:
        a("s_mov_b32 s36, 0")
        a("s_mov_b32 s37, 0")
    def load(i):
        if i == 16:
            a("s_mov_b32 s32, s34")
            a("s_mov_b32 s33, s35")
            a("s_mov_b32 s36, s37")
        n = 16 if i < 16 else 28
        b = (i % D) * 16
        a("s_add_u32 s42, s32, s36")
        a("s_add_u32 s43, s33, s36")
        f2 = " nt" if cfg.get("nt", 0) & 64 else ""
        a(f"buffer_load_dwordx4 {ar(b,4)}, v201, s[12:15], s42 offen{f2}")
        a(f"buffer_load_dwordx4 {ar(b+4,4)}, v201, s[12:15], s42 offen offset:1024{f2}")
        a(f"buffer_load_dwordx4 {ar(b+8,4)}, v201, s[16:19], s43 offen{f2}")
        a(f"buffer_load_dwordx4 {ar(b+12,4)}, v201, s[16:19], s43 offen offset:1024{f2}")
        a("s_add_u32 s36, s36, 2048")
        a(f"s_cmp_eq_u32 s36, {n*2048}")
        a("s_cselect_b32 s36, 0, s36")
    for i in range(D):
        load(i)
    for i in range(NS):
        out = min(D - 1, NS - 1 - i)
        a(f"s_waitcnt vmcnt({out*4})")
        b = (i % D) * 16
        base = 0 if i < 16 else 64
        for mi in range(2):
            for ni in range(2):
                d = vr(base + (mi * 2 + ni) * 16, 16)
                a(f"v_mfma_f32_32x32x16_bf16 {d}, {ar(b+8+4*mi,4)}, {ar(b+4*ni,4)}, {d}")
        if i + D < NS:
            load(i + D)
    a("s_nop 15")
    a("s_nop 3")
    for mi in range(2):
        for ni in range(2):
            for r in range(16):
                y = (mi * 2 + ni) * 16 + r
                a(f"v_sub_f32 v{y}, v{y}, v{64+y}")
                a(f"v_fma_f32 v{y}, v{y}, v{204+ni}, v{64+y}")
    PIT = 272
    WSZ = 64 * PIT
    a("v_and_b32 v202, 31, v200")
    a(f"v_mul_u32_u24 v202, {PIT}, v202")
    a("v_lshrrev_b32 v203, 5, v200")
    a("v_lshl_add_u32 v202, v203, 4, v202")
    a(f"s_mul_i32 s28, s3, {WSZ}")
    a("v_add_u32 v202, s28, v202")
    for mi in range(2):
        for ni in range(2):
            for q in range(4):
                src = (mi * 2 + ni) * 16 + 4 * q
                off = ni * 32 * PIT + (mi * 32 + 8 * q) * 4
                a(f"ds_write_b128 v202, {vr(src,4)} offset:{off}")
    a("s_waitcnt lgkmcnt(0)")
    a("s_barrier")
    a("s_lshl_b32 s28, s3, 6")
    a("v_add_u32 v203, s28, v200")
    a("v_lshrrev_b32 v206, 2, v203")
    a("v_and_b32 v207, 3, v203")
    a(f"v_mul_u32_u24 v208, {PIT}, v206")
    a("v_lshl_add_u32 v208, v207, 6, v208")
    for w in range(4):
        for q in range(4):
            a(f"ds_read_b128 {vr(w*16+q*4,4)}, v208 offset:{w*WSZ + q*16}")
    a("s_waitcnt lgkmcnt(0)")
    for i in range(16):
        a(f"v_add_f32 v{i}, v{i}, v{16+i}")
        a(f"v_add_f32 v{32+i}, v{32+i}, v{48+i}")
    for i in range(16):
        a(f"v_add_f32 v{i}, v{i}, v{32+i}")
    for i in range(8):
        a(f"v_cvt_pk_bf16_f32 v{64+i}, v{2*i}, v{2*i+1}")
    a("s_lshl_b32 s28, s10, 16")
    a("s_lshl_b32 s29, s11, 7")
    a("s_add_u32 s28, s28, s29")
    a("v_lshlrev_b32 v206, 10, v206")
    a("v_lshl_add_u32 v206, v207, 5, v206")
    a("buffer_store_dwordx4 v[64:67], v206, s[24:27], s28 offen")
    a("buffer_store_dwordx4 v[68:71], v206, s[24:27], s28 offen offset:16")
    prof_end(a, cfg, 6, 3, 1)
    a.label("S2_exit")
    a("s_endpgm")
    return D * 16

def build(cfg):
    a = Asm()
    stage1(a, cfg)
    nacc = stage2(a, cfg)
    lds1 = 3 * 49152
    lds2 = 4 * 64 * 272
    out = HEADER
    out += f"; @launch kernel={K1} grid=(256,1,1) block=(512,1,1) lds={lds1}\n"
    out += f"; @launch kernel={K2} grid=(256,1,1) block=(256,1,1) lds={lds2}\n"
    out += '.amdgcn_target "amdgcn-amd-amdhsa--gfx950"\n.text\n'
    out += a.text()
    out += f""".section .rodata,"a"
.p2align 6
.amdhsa_kernel {K1}
  .amdhsa_next_free_vgpr 256
  .amdhsa_next_free_sgpr 100
  .amdhsa_accum_offset 256
  .amdhsa_group_segment_fixed_size 0
  .amdhsa_kernarg_size 104
  .amdhsa_user_sgpr_count 2
  .amdhsa_user_sgpr_kernarg_segment_ptr 1
  .amdhsa_system_sgpr_workgroup_id_x 1
.end_amdhsa_kernel
.p2align 6
.amdhsa_kernel {K2}
  .amdhsa_next_free_vgpr {256 + nacc}
  .amdhsa_next_free_sgpr 96
  .amdhsa_accum_offset 256
  .amdhsa_group_segment_fixed_size 0
  .amdhsa_kernarg_size 104
  .amdhsa_user_sgpr_count 2
  .amdhsa_user_sgpr_kernarg_segment_ptr 1
  .amdhsa_system_sgpr_workgroup_id_x 1
.end_amdhsa_kernel
"""
    return out

if __name__ == "__main__":
    cfg = {}
    outp = sys.argv[1] if len(sys.argv) > 1 else "gated_mix__spectral_fnet__glu_gated_glu__prompt.s"
    for kv in sys.argv[2:]:
        k, v = kv.split("=")
        cfg[k] = int(v)
    open(outp, "w").write(build(cfg))
    print("wrote", outp)
```

```python
import sys

HEADER = open("gated_mix__spectral_fnet__glu_gated_glu__prompt.s.ref").read().split("; Override launch geometry")[0]

K1 = "gated_mix__spectral_fnet__glu_gated_glu__prompt_kernel"
K2 = "gmix_stage2_kernel"

A2F = 0
TT_STRIDE = 176 * 2048
A2F_SIZE = 32 * TT_STRIDE
B2F = A2F_SIZE
B2F_SIZE = 8 * TT_STRIDE
GATE = B2F + B2F_SIZE
GATE_SIZE = 8192

class Asm:
    def __init__(self):
        self.l = []
        self.n = 0
    def __call__(self, s):
        self.l.append("    " + s)
    def label(self, s):
        self.l.append(s + ":")
    def c(self, s):
        self.l.append("    ; " + s)
    def newlabel(self, p="L"):
        self.n += 1
        return f"{p}_{self.n}"
    def text(self):
        return "\n".join(self.l) + "\n"

def vr(b, n=1):
    return f"v{b}" if n == 1 else f"v[{b}:{b+n-1}]"
def ar(b, n=1):
    return f"a{b}" if n == 1 else f"a[{b}:{b+n-1}]"
def sr(b, n=1):
    return f"s{b}" if n == 1 else f"s[{b}:{b+n-1}]"

def srd(a, dst, plo, size, off=None):
    if off:
        a(f"s_add_u32 s{dst}, s{plo}, {off:#x}")
        a(f"s_addc_u32 s{dst+1}, s{plo+1}, 0")
    else:
        a(f"s_mov_b32 s{dst}, s{plo}")
        a(f"s_mov_b32 s{dst+1}, s{plo+1}")
    a(f"s_mov_b32 s{dst+2}, {size:#x}")
    a(f"s_mov_b32 s{dst+3}, 0x00020000")

PROF = 0x1800000
def prof_start(a, cfg):
    if cfg.get("prof"):
        a("s_memrealtime s[80:81]")
        a("s_memtime s[82:83]")
def prof_end(a, cfg, pws, wid, stage):
    if cfg.get("prof"):
        a("s_memrealtime s[84:85]")
        a("s_memtime s[86:87]")
        a(f"s_add_u32 s88, s{pws}, {PROF + stage*0x10000:#x}")
        a(f"s_addc_u32 s89, s{pws+1}, 0")
        a("s_mov_b32 s90, 0x10000")
        a("s_mov_b32 s91, 0x00020000")
        a("s_lshl_b32 s92, s2, 3")
        a(f"s_add_u32 s92, s92, s{wid}")
        a("s_lshl_b32 s92, s92, 4")
        a("s_waitcnt lgkmcnt(0)")
        a("s_sub_u32 s86, s86, s82")
        a("v_mov_b32 v252, s80")
        a("v_mov_b32 v253, s84")
        a("v_mov_b32 v254, s86")
        a(f"v_mov_b32 v255, s{wid}")
        a("v_mov_b32 v251, 0")
        a("buffer_store_dwordx4 v[252:255], v251, s[88:91], s92 offen")

S_WID = 3
P_AX, P_CR, P_CI, P_HR, P_HI, P_BX, P_WG, P_WU = 16, 18, 20, 22, 24, 26, 28, 30
P_WD, P_GW, P_OUT, P_DBG, P_WS = 32, 34, 36, 38, 40
R_T, R_M1, R_M2, R_O = 44, 48, 52, 56
S_XCD, S_IDX = 4, 5
S_T0, S_M0 = 60, 61
S_SLOT = 62
S_CNT = 63
S_LW = 64
S_KT = 65
S_TMP = 66
S_OBASE = 72
S_JOB = 73
S_ROT = 74
S_K0 = 75
S_KN = 95

V_LANE = 250
V_TMP = 240

def gemm_role(a, tag, NM, LA, S, nK, njobs, pitchT, pitchM, cfg, touch):
    SB = 16384 * (1 + NM)
    DPT = 4 * (1 + NM)
    ntmask = cfg.get("nt", 0)
    flT = " nt" if ntmask & (1 if NM == 1 else 2) else ""
    flM = " nt" if ntmask & (2 if NM == 1 else 4) else ""
    flS = " nt" if ntmask & 32 else ""
    G = nK * njobs
    nsets = 4 if LA >= 2 else 2
    L_loader = f"{tag}_loader"
    L_end = f"{tag}_end"
    a(f"s_cmp_ge_u32 s{S_WID}, 4")
    a(f"s_cbranch_scc1 {L_loader}")

    ACC = 0
    NACC = NM * 4
    FR = 128
    R = 2 + NM * 4
    SETSZ = 8 + NM * 8
    VT = 224
    VT0 = 192
    VM0 = 196
    a.c(f"{tag}: compute wave setup")
    a(f"s_lshr_b32 s{S_TMP}, s{S_WID}, 1")
    a(f"s_and_b32 s{S_TMP+1}, s{S_WID}, 1")
    a(f"v_and_b32 v{V_TMP}, 31, v{V_LANE}")
    a(f"v_lshrrev_b32 v{V_TMP+1}, 5, v{V_LANE}")
    a(f"v_bfe_u32 v{V_TMP+2}, v{V_LANE}, 1, 3")
    a(f"v_xor_b32 v{V_TMP+1}, v{V_TMP+1}, v{V_TMP+2}")
    a(f"v_lshlrev_b32 v{V_TMP+1}, 4, v{V_TMP+1}")
    a(f"v_lshl_add_u32 v{V_TMP}, v{V_TMP}, 7, v{V_TMP+1}")
    a(f"s_lshl_b32 s{S_TMP+2}, s{S_TMP}, 13")
    a(f"v_add_u32 v{VT0}, s{S_TMP+2}, v{V_TMP}")
    for j in range(1, 4):
        a(f"v_xor_b32 v{VT0+j}, {32*j}, v{VT0}")
    a(f"v_bfe_u32 v{V_TMP}, v{V_LANE}, 2, 2")
    a(f"v_lshrrev_b32 v{V_TMP+1}, 5, v{V_LANE}")
    a(f"v_lshl_add_u32 v{V_TMP+1}, v{V_TMP+1}, 3, v{V_TMP}")
    a(f"v_lshlrev_b32 v{V_TMP+1}, 8, v{V_TMP+1}")
    a(f"v_bfe_u32 v{V_TMP+2}, v{V_LANE}, 4, 1")
    a(f"v_lshl_add_u32 v{V_TMP+1}, v{V_TMP+2}, 5, v{V_TMP+1}")
    a(f"v_and_b32 v{V_TMP+2}, 3, v{V_LANE}")
    a(f"v_lshl_add_u32 v{V_TMP+1}, v{V_TMP+2}, 3, v{V_TMP+1}")
    a(f"v_add_u32 v{V_TMP+1}, 16384, v{V_TMP+1}")
    a(f"s_lshl_b32 s{S_TMP+2}, s{S_TMP+1}, 1")
    for mi in range(2):
        a(f"s_add_u32 s{S_TMP+3}, s{S_TMP+2}, {mi}")
        a(f"v_xor_b32 v{V_TMP+2}, s{S_TMP+3}, v{V_TMP}")
        a(f"v_lshl_add_u32 v{VM0+mi}, v{V_TMP+2}, 6, v{V_TMP+1}")
    VO = 236
    a(f"s_mul_i32 s{S_TMP+2}, s{S_TMP}, {TT_STRIDE}")
    a(f"s_lshl_b32 s{S_TMP+3}, s{S_TMP+1}, 13")
    a(f"s_add_u32 s{S_TMP+2}, s{S_TMP+2}, s{S_TMP+3}")
    a(f"v_lshlrev_b32 v{VO}, 4, v{V_LANE}")
    a(f"v_add_u32 v{VO}, s{S_TMP+2}, v{VO}")
    a(f"s_mov_b32 s{S_SLOT}, 0")
    a(f"s_mov_b32 s{S_JOB}, 0")

    def tfrag(st, ni):
        return FR + st * SETSZ + ni * 4
    def mfrag(st, m, mi):
        return FR + st * SETSZ + 8 + (m * 2 + mi) * 4
    def acc(m, mi, ni):
        return ACC + ((m * 2 + mi) * 2 + ni) * 16
    def reads(j, st, aset):
        out = []
        vt = VT + aset * 6
        vm = vt + 4
        for ni in range(2):
            out.append(f"ds_read_b128 {vr(tfrag(st, ni), 4)}, v{vt+j} offset:{ni*4096}")
        for m in range(NM):
            for mi in range(2):
                for q in range(2):
                    out.append(f"ds_read_b64_tr_b16 {vr(mfrag(st, m, mi)+2*q, 2)}, v{vm+mi} offset:{m*16384 + j*4096 + q*1024}")
        return out
    def mfmas(st):
        out = []
        for m in range(NM):
            for mi in range(2):
                for ni in range(2):
                    d = vr(acc(m, mi, ni), 16)
                    out.append(f"v_mfma_f32_32x32x16_bf16 {d}, {vr(mfrag(st, m, mi), 4)}, {vr(tfrag(st, ni), 4)}, {d}")
        return out
    def set_addr(aset):
        out = []
        vt = VT + aset * 6
        for j in range(4):
            out.append(f"v_add_u32 v{vt+j}, s{S_SLOT}, v{VT0+j}")
        for mi in range(2):
            out.append(f"v_add_u32 v{vt+4+mi}, s{S_SLOT}, v{VM0+mi}")
        return out
    def next_slot():
        a(f"s_add_u32 s{S_SLOT}, s{S_SLOT}, {SB}")
        a(f"s_cmp_eq_u32 s{S_SLOT}, {S*SB}")
        a(f"s_cselect_b32 s{S_SLOT}, 0, s{S_SLOT}")
    def interleave(mf, rd, extra=()):
        n = len(mf)
        if cfg.get("nomfma"):
            mf = ["s_nop 0"] * n
        if cfg.get("noreads"):
            rd = []
        rd = list(rd) + list(extra)
        per = (len(rd) + n - 1) // n if rd else 0
        ri = 0
        for i, m in enumerate(mf):
            a(m)
            k = 0
            while ri < len(rd) and k < per:
                a(rd[ri]); ri += 1; k += 1
        while ri < len(rd):
            a(rd[ri]); ri += 1

    if cfg.get("touch", 1):
        touch(a, "init")
    L_job = f"{tag}_job"
    a.label(L_job)
    for i in range(NACC * 16):
        a(f"v_mov_b32 v{ACC+i}, 0")
    for x in set_addr(0):
        a(x)
    a("s_barrier")
    for s_ in range(LA):
        for r_ in reads(s_, s_ % nsets, 0):
            a(r_)
    assert nK % 2 == 0
    a(f"s_mov_b32 s{S_CNT}, {nK//2}")
    L_loop = f"{tag}_cloop"
    L_last = f"{tag}_clast"
    a.label(L_loop)
    def tile(aset, last):
        for j in range(4):
            extra = []
            if j == 0 and not last:
                next_slot()
                extra = set_addr(aset ^ 1)
            if j == 4 - LA and not last:
                a("s_waitcnt lgkmcnt(0)")
                a("s_barrier")
            else:
                if j + LA < 4 or not last:
                    a(f"s_waitcnt lgkmcnt({(LA-1)*R})")
                else:
                    a(f"s_waitcnt lgkmcnt({min(3-j, LA-1)*R})")
            if j + LA < 4:
                rd = reads(j + LA, (j + LA) % nsets, aset)
            elif not last:
                rd = reads((j + LA) % 4, (j + LA) % nsets, aset ^ 1)
            else:
                rd = []
            interleave(mfmas(j % nsets), rd, extra)
    tile(0, False)
    if cfg.get("touch", 1):
        touch(a, "loop0")
    a(f"s_sub_u32 s{S_CNT}, s{S_CNT}, 1")
    a(f"s_cmp_eq_u32 s{S_CNT}, 0")
    a(f"s_cbranch_scc1 {L_last}")
    tile(1, False)
    if cfg.get("touch", 1):
        touch(a, "loop1")
    a(f"s_branch {L_loop}")
    a.label(L_last)
    tile(1, True)
    next_slot()
    a("s_nop 15")
    a("s_nop 3")
    TP = FR
    def store_tile(src, mi, ni):
        for b in range(2):
            t = TP + 32 + ((mi * 2 + ni) * 2 + b) * 4
            for h in range(2):
                g_ = 2 * b + h
                a(f"v_cvt_pk_bf16_f32 v{t+2*h}, v{src+4*g_}, v{src+4*g_+1}")
                a(f"v_cvt_pk_bf16_f32 v{t+2*h+1}, v{src+4*g_+2}, v{src+4*g_+3}")
            a("s_nop 1")
            a(f"v_permlane32_swap_b32 v{t}, v{t+2}")
            a(f"v_permlane32_swap_b32 v{t+1}, v{t+3}")
            off = (mi * 2 + b) * 2048 + ni * 1024
            a(f"buffer_store_dwordx4 {vr(t,4)}, v{VO}, s[{R_O}:{R_O+3}], s{S_OBASE} offen offset:{off & 4095}{flS}" if off < 4096 else
              f"buffer_store_dwordx4 {vr(t,4)}, v{VO+1}, s[{R_O}:{R_O+3}], s{S_OBASE} offen offset:{off - 4096}{flS}")
    a(f"v_add_u32 v{VO+1}, 4096, v{VO}")
    if NM == 1:
        for mi in range(2):
            for ni in range(2):
                store_tile(acc(0, mi, ni), mi, ni)
    else:
        a(f"s_mov_b32 s{S_TMP+4}, 0xbfb8aa3b")
        for mi in range(2):
            for ni in range(2):
                g_ = acc(0, mi, ni); u_ = acc(1, mi, ni)
                for i in range(16):
                    a(f"v_mul_f32 v{g_+i}, s{S_TMP+4}, v{g_+i}")
                for i in range(16):
                    a(f"v_exp_f32 v{g_+i}, v{g_+i}")
                for i in range(16):
                    a(f"v_add_f32 v{g_+i}, 1.0, v{g_+i}")
                for i in range(16):
                    a(f"v_rcp_f32 v{g_+i}, v{g_+i}")
                for i in range(16):
                    a(f"v_mul_f32 v{g_+i}, v{g_+i}, v{u_+i}")
                store_tile(g_, mi, ni)
    if njobs > 1:
        a(f"s_add_u32 s{S_OBASE}, s{S_OBASE}, {2*TT_STRIDE}")
        a(f"s_add_u32 s{S_JOB}, s{S_JOB}, 1")
        a(f"s_cmp_lt_u32 s{S_JOB}, {njobs}")
        a(f"s_cbranch_scc1 {L_job}")
    a(f"s_branch {L_end}")

    a.label(L_loader)
    VLT = 0
    VLM = 4
    a(f"s_sub_u32 s{S_TMP}, s{S_WID}, 4")
    a(f"s_lshl_b32 s{S_LW}, s{S_TMP}, 12")
    a(f"v_lshrrev_b32 v{V_TMP}, 3, v{V_LANE}")
    a(f"s_lshl_b32 s{S_TMP+1}, s{S_TMP}, 5")
    a(f"v_add_u32 v{V_TMP}, s{S_TMP+1}, v{V_TMP}")
    a(f"v_and_b32 v{V_TMP+1}, 7, v{V_LANE}")
    a(f"v_lshrrev_b32 v{V_TMP+2}, 4, v{V_LANE}")
    a(f"v_xor_b32 v{V_TMP+1}, v{V_TMP+1}, v{V_TMP+2}")
    for i in range(4):
        a(f"v_add_u32 v{V_TMP+3}, {8*i}, v{V_TMP}")
        a(f"v_mul_u32_u24 v{V_TMP+3}, {pitchT}, v{V_TMP+3}")
        a(f"v_xor_b32 v{V_TMP+4}, {(i&1)*4}, v{V_TMP+1}")
        a(f"v_lshl_add_u32 v{VLT+i}, v{V_TMP+4}, 4, v{V_TMP+3}")
    a(f"v_lshrrev_b32 v{V_TMP}, 4, v{V_LANE}")
    a(f"v_lshlrev_b32 v{V_TMP+2}, 2, v{V_TMP}")
    a(f"v_and_b32 v{V_TMP+1}, 15, v{V_LANE}")
    a(f"v_xor_b32 v{V_TMP+1}, v{V_TMP+1}, v{V_TMP+2}")
    a(f"s_lshl_b32 s{S_TMP+1}, s{S_TMP}, 4")
    a(f"v_add_u32 v{V_TMP}, s{S_TMP+1}, v{V_TMP}")
    for i in range(4):
        a(f"v_add_u32 v{V_TMP+3}, {4*i}, v{V_TMP}")
        a(f"v_mul_u32_u24 v{V_TMP+3}, {pitchM}, v{V_TMP+3}")
        a(f"v_lshl_add_u32 v{VLM+i}, v{V_TMP+1}, 4, v{V_TMP+3}")
    a(f"s_mov_b32 s{S_SLOT}, 0")
    rot = cfg.get("rot", 0) and not (cfg.get("lat", 0) and NM == 1)
    if rot:
        a(f"s_mov_b32 s{S_KT}, s{S_K0}")
        a(f"s_lshl_b32 s{S_TMP+2}, s{S_KT}, 7")
        a(f"s_add_u32 s{S_T0}, s{S_T0}, s{S_TMP+2}")
        a(f"s_mul_i32 s{S_TMP+2}, s{S_KT}, {64*pitchM}")
        a(f"s_add_u32 s{S_M0}, s{S_M0}, s{S_TMP+2}")
        a(f"s_mov_b32 s{S_KN}, 0")
    else:
        a(f"s_mov_b32 s{S_KT}, 0")
    lat = cfg.get("lat", 0) and NM == 1
    LG = cfg.get("latg", 4)
    if lat:
        a(f"s_mov_b32 s{S_KT}, 0")
        a(f"s_lshr_b32 s{S_K0}, s{S_K0}, 3")
        if LG == 8:
            a(f"s_lshl_b32 s{S_K0}, s{S_K0}, 1")
        if LG == 16:
            a(f"s_lshl_b32 s{S_K0}, s{S_K0}, 2")
        if LG == 2:
            a(f"s_and_b32 s{S_K0}, s{S_K0}, 1")
    def issue():
        if lat:
            a(f"s_add_u32 s{S_TMP+3}, s{S_KT}, s{S_K0}")
            a(f"s_and_b32 s{S_TMP+3}, s{S_TMP+3}, {LG-1}")
            a(f"s_andn2_b32 s{S_TMP+4}, s{S_KT}, {LG-1}")
            a(f"s_or_b32 s{S_TMP+3}, s{S_TMP+3}, s{S_TMP+4}")
            a(f"s_lshl_b32 s{S_TMP+4}, s{S_TMP+3}, 7")
            a(f"s_add_u32 s76, s{S_T0}, s{S_TMP+4}")
            a(f"s_lshl_b32 s{S_TMP+4}, s{S_TMP+3}, 16")
            a(f"s_add_u32 s77, s{S_M0}, s{S_TMP+4}")
            a(f"s_add_u32 s{S_KT}, s{S_KT}, 1")
            a(f"s_add_u32 s{S_TMP+2}, s{S_SLOT}, s{S_LW}")
            for i in range(4):
                a(f"s_add_u32 m0, s{S_TMP+2}, {i*1024}")
                a("s_nop 0")
                a(f"buffer_load_dwordx4 v{VLT+i}, s[{R_T}:{R_T+3}], s76 offen{flT} lds")
            for i in range(4):
                a(f"s_add_u32 m0, s{S_TMP+2}, {16384 + i*1024}")
                a("s_nop 0")
                a(f"buffer_load_dwordx4 v{VLM+i}, s[{R_M1}:{R_M1+3}], s77 offen{flM} lds")
            next_slot()
            return
        a(f"s_add_u32 s{S_TMP+2}, s{S_SLOT}, s{S_LW}")
        for i in range(4):
            if cfg.get("noload") or (cfg.get("noT") and NM == 1): break
            a(f"s_add_u32 m0, s{S_TMP+2}, {i*1024}")
            a("s_nop 0")
            a(f"buffer_load_dwordx4 v{VLT+i}, s[{R_T}:{R_T+3}], s{S_T0} offen{flT} lds")
        for m in range(NM):
            if cfg.get("noload") or (cfg.get("noM") and NM == 1): break
            rm = R_M1 if m == 0 else R_M2
            for i in range(4):
                a(f"s_add_u32 m0, s{S_TMP+2}, {16384*(1+m) + i*1024}")
                a("s_nop 0")
                a(f"buffer_load_dwordx4 v{VLM+i}, s[{rm}:{rm+3}], s{S_M0} offen{flM} lds")
        next_slot()
        a(f"s_add_u32 s{S_T0}, s{S_T0}, 128")
        a(f"s_add_u32 s{S_M0}, s{S_M0}, {64*pitchM}")
        if rot:
            lab = a.newlabel(f"{tag}_nj")
            a(f"s_add_u32 s{S_KT}, s{S_KT}, 1")
            a(f"s_cmp_lg_u32 s{S_KT}, {nK}")
            a(f"s_cbranch_scc1 {lab}")
            a(f"s_mov_b32 s{S_KT}, 0")
            a(f"s_sub_u32 s{S_T0}, s{S_T0}, {nK*128}")
            a(f"s_sub_u32 s{S_M0}, s{S_M0}, {nK*64*pitchM}")
            a.label(lab)
            if njobs > 1:
                lab = a.newlabel(f"{tag}_nk")
                a(f"s_add_u32 s{S_KN}, s{S_KN}, 1")
                a(f"s_cmp_lg_u32 s{S_KN}, {nK}")
                a(f"s_cbranch_scc1 {lab}")
                a(f"s_add_u32 s{S_T0}, s{S_T0}, {128*pitchT}")
                a.label(lab)
        elif njobs > 1:
            lab = a.newlabel(f"{tag}_nj")
            a(f"s_add_u32 s{S_KT}, s{S_KT}, 1")
            a(f"s_cmp_lg_u32 s{S_KT}, {nK}")
            a(f"s_cbranch_scc1 {lab}")
            a(f"s_mov_b32 s{S_KT}, 0")
            a(f"s_add_u32 s{S_T0}, s{S_T0}, {128*pitchT - nK*128}")
            a(f"s_sub_u32 s{S_M0}, s{S_M0}, {nK*64*pitchM}")
            a.label(lab)
    def stamp():
        if cfg.get("stamp"):
            a("s_memtime s[76:77]")
            a("s_waitcnt lgkmcnt(0)")
            a("s_sub_u32 s76, s76, s82")
            a("s_mov_b32 m0, s94")
            a("s_nop 3")
            a("v_writelane_b32 v100, s76, m0")
            a("s_add_u32 s94, s94, 1")
    a("s_mov_b32 s94, 0")
    if cfg.get("pair", 1) and NM == 1 and njobs == 1 and not rot:
        def issT(slot_expr_sgpr, soff):
            for i in range(4):
                a(f"s_add_u32 m0, s{slot_expr_sgpr}, {i*1024}")
                a("s_nop 0")
                a(f"buffer_load_dwordx4 v{VLT+i}, s[{R_T}:{R_T+3}], s{soff} offen{flT} lds")
        def issM(slot_expr_sgpr, soff):
            for i in range(4):
                a(f"s_add_u32 m0, s{slot_expr_sgpr}, {16384 + i*1024}")
                a("s_nop 0")
                a(f"buffer_load_dwordx4 v{VLM+i}, s[{R_M1}:{R_M1+3}], s{soff} offen{flM} lds")
        SA, SBs, ST1, SM1 = S_TMP+2, S_TMP+3, S_TMP+4, S_TMP+5
        stamp()
        for t in range(3):
            a(f"s_add_u32 s{SA}, s{S_LW}, {t*SB}")
            a(f"s_add_u32 s{ST1}, s{S_T0}, {t*128}")
            issT(SA, ST1)
        for t in range(3):
            a(f"s_add_u32 s{SA}, s{S_LW}, {t*SB}")
            a(f"s_add_u32 s{SM1}, s{S_M0}, {t*64*pitchM}")
            issM(SA, SM1)
        stamp()
        a(f"s_add_u32 s{S_T0}, s{S_T0}, {3*128}")
        a(f"s_add_u32 s{S_M0}, s{S_M0}, {3*64*pitchM}")
        a(f"s_mov_b32 s{S_SLOT}, {3*SB}")
        a("s_waitcnt vmcnt(8)")
        a("s_barrier")
        stamp()
        a("s_waitcnt vmcnt(4)")
        a("s_barrier")
        stamp()
        def group(two):
            a(f"s_add_u32 s{SA}, s{S_SLOT}, s{S_LW}")
            next_slot()
            a(f"s_add_u32 s{SBs}, s{S_SLOT}, s{S_LW}")
            a(f"s_add_u32 s{ST1}, s{S_T0}, 128")
            a(f"s_add_u32 s{SM1}, s{S_M0}, {64*pitchM}")
            issT(SA, S_T0)
            if two: issT(SBs, ST1)
            issM(SA, S_M0)
            if two: issM(SBs, SM1)
            next_slot()
            a(f"s_add_u32 s{S_T0}, s{S_T0}, 256")
            a(f"s_add_u32 s{S_M0}, s{S_M0}, {128*pitchM}")
        group(True)
        a("s_waitcnt vmcnt(16)")
        a("s_barrier")
        stamp()
        a(f"s_mov_b32 s{S_CNT}, 13")
        L_ll = f"{tag}_lloop"
        a.label(L_ll)
        a("s_waitcnt vmcnt(4)")
        a("s_barrier")
        stamp()
        group(True)
        a("s_waitcnt vmcnt(16)")
        a("s_barrier")
        stamp()
        a(f"s_sub_u32 s{S_CNT}, s{S_CNT}, 1")
        a(f"s_cmp_lg_u32 s{S_CNT}, 0")
        a(f"s_cbranch_scc1 {L_ll}")
        a("s_waitcnt vmcnt(4)")
        a("s_barrier")
        stamp()
        group(False)
        a("s_waitcnt vmcnt(8)")
        a("s_barrier")
        stamp()
        a("s_waitcnt vmcnt(0)")
        a("s_barrier")
        stamp()
    else:
        stamp()
        for g in range(S - 1):
            issue()
        stamp()
        a(f"s_mov_b32 s{S_CNT}, {G-(S-1)}")
        L_ll = f"{tag}_lloop"
        a.label(L_ll)
        a(f"s_waitcnt vmcnt({(S-2)*DPT})")
        a("s_barrier")
        stamp()
        issue()
        a(f"s_sub_u32 s{S_CNT}, s{S_CNT}, 1")
        a(f"s_cmp_lg_u32 s{S_CNT}, 0")
        a(f"s_cbranch_scc1 {L_ll}")
        for g in range(G - (S - 1), G):
            a(f"s_waitcnt vmcnt({(G-1-g)*DPT})")
            a("s_barrier")
            stamp()
    if cfg.get("stamp"):
        a(f"s_add_u32 s88, s{P_WS}, {PROF + 0x40000:#x}")
        a(f"s_addc_u32 s89, s{P_WS+1}, 0")
        a("s_mov_b32 s90, 0x100000")
        a("s_mov_b32 s91, 0x00020000")
        a("s_lshl_b32 s92, s2, 2")
        a(f"s_add_u32 s92, s92, s{S_TMP}")
        a("s_lshl_b32 s92, s92, 8")
        a(f"v_lshlrev_b32 v101, 2, v{V_LANE}")
        a("buffer_store_dword v100, v101, s[88:91], s92 offen")
    a.label(L_end)
    prof_end(a, cfg, P_WS, S_WID, 0)
    a("s_endpgm")

def aux_role(a, cfg):
    a.c("AUX: gate, H relayout, Wd transpose (all loads issued up front)")
    AW = S_TMP
    a(f"s_sub_u32 s{S_TMP+1}, s{S_IDX}, 30")
    a(f"s_lshl_b32 s{S_TMP+1}, s{S_TMP+1}, 3")
    a(f"s_add_u32 s{S_TMP+1}, s{S_TMP+1}, s{S_XCD}")
    a(f"s_lshl_b32 s{AW}, s{S_TMP+1}, 3")
    a(f"s_add_u32 s{AW}, s{AW}, s{S_WID}")
    RX, RG, RW, RH, RD = R_T, R_M1, R_M2, R_O, 96
    srd(a, RX, P_AX, 2048*512*2)
    srd(a, RG, P_GW, 1024)
    srd(a, RW, P_WS, GATE + GATE_SIZE)
    srd(a, RD, P_WD, 1792*512*2)
    a(f"s_bitcmp1_b32 s{AW}, 3")
    a(f"s_cselect_b32 s{S_TMP+2}, s{P_HI}, s{P_HR}")
    a(f"s_cselect_b32 s{S_TMP+3}, s{P_HI+1}, s{P_HR+1}")
    a(f"s_cselect_b32 s{S_M0}, 0x80008000, 0")
    srd(a, RH, S_TMP+2, 512*512*2)
    a(f"v_lshlrev_b32 v1, 2, v{V_LANE}")
    a(f"s_mul_i32 s{S_TMP+1}, s{AW}, 7")
    for i in range(7):
        a(f"s_add_u32 s{S_TMP+4}, s{S_TMP+1}, {i}")
        a(f"s_lshr_b32 s{S_TMP+2}, s{S_TMP+4}, 2")
        a(f"s_and_b32 s{S_TMP+3}, s{S_TMP+4}, 3")
        a(f"s_lshl_b32 s{S_T0}, s{S_TMP+2}, 13")
        a(f"s_lshl_b32 s{S_CNT}, s{S_TMP+3}, 8")
        a(f"s_add_u32 s{S_T0}, s{S_T0}, s{S_CNT}")
        a(f"s_add_u32 s{S_CNT}, s{S_T0}, 4096")
        for ff in range(8):
            o = ff * 1024
            a(f"buffer_load_dword v{64+8*i+ff}, v1, s[{RD}:{RD+3}], s{S_T0 if o < 4096 else S_CNT} offen offset:{o & 4095}")
    a(f"s_lshr_b32 s{S_TMP+1}, s{AW}, 4")
    a(f"s_and_b32 s{S_TMP+4}, s{AW}, 15")
    a(f"v_and_b32 v5, 31, v{V_LANE}")
    a(f"s_lshl_b32 s{S_TMP+6}, s{S_TMP+1}, 6")
    a(f"v_add_u32 v5, s{S_TMP+6}, v5")
    a(f"v_lshlrev_b32 v5, 10, v5")
    a(f"v_lshrrev_b32 v6, 5, v{V_LANE}")
    a(f"v_lshl_add_u32 v5, v6, 4, v5")
    a(f"v_add_u32 v6, 32768, v5")
    a(f"s_and_b32 s{S_TMP+6}, s{S_TMP+4}, 7")
    a(f"s_lshl_b32 s{S_TMP+6}, s{S_TMP+6}, 7")
    for i in range(8):
        a(f"buffer_load_dwordx4 {vr(128+4*i,4)}, v{6 if i & 1 else 5}, s[{RH}:{RH+3}], s{S_TMP+6} offen offset:{(i >> 1) * 32}")
    a(f"s_mul_i32 s{S_SLOT}, s{S_TMP+1}, {TT_STRIDE}")
    a(f"s_lshl_b32 s{S_TMP+4}, s{S_TMP+4}, 13")
    a(f"s_add_u32 s{S_SLOT}, s{S_SLOT}, s{S_TMP+4}")
    a(f"s_add_u32 s{S_SLOT}, s{S_SLOT}, {B2F:#x}")
    a(f"v_lshlrev_b32 v8, 4, v{V_LANE}")
    a(f"s_lshl_b32 s{S_CNT}, s{AW}, 14")
    a(f"s_add_u32 s{S_LW}, s{S_CNT}, 4096")
    a(f"s_add_u32 s{S_KT}, s{S_CNT}, 8192")
    a(f"s_add_u32 s{S_JOB}, s{S_CNT}, 12288")
    for i in range(16):
        so = [S_CNT, S_LW, S_KT, S_JOB][i >> 2]
        a(f"buffer_load_dwordx4 {vr(160+4*i,4)}, v8, s[{RX}:{RX+3}], s{so} offen offset:{(i & 3)*1024}")
    a(f"buffer_load_dwordx4 v[16:19], v8, s[{RG}:{RG+3}], 0 offen")
    a(f"s_mov_b32 s{S_TMP+5}, 0x05040100")
    a(f"s_mov_b32 s{S_TMP+6}, 0x07060302")
    a(f"v_lshrrev_b32 v2, 5, v{V_LANE}")
    a(f"v_mul_u32_u24 v2, {TT_STRIDE}, v2")
    a(f"v_bfe_u32 v3, v{V_LANE}, 4, 1")
    a(f"v_lshl_add_u32 v2, v3, 10, v2")
    a(f"v_and_b32 v3, 15, v{V_LANE}")
    a(f"v_lshl_add_u32 v2, v3, 5, v2")
    a(f"s_mul_i32 s{S_TMP+1}, s{AW}, 7")
    a("s_waitcnt vmcnt(25)")
    for i in range(7):
        a(f"s_add_u32 s{S_TMP+4}, s{S_TMP+1}, {i}")
        a(f"s_lshr_b32 s{S_TMP+2}, s{S_TMP+4}, 2")
        a(f"s_and_b32 s{S_TMP+3}, s{S_TMP+4}, 3")
        a(f"s_mul_i32 s{S_T0}, s{S_TMP+3}, {2*TT_STRIDE}")
        a(f"s_lshr_b32 s{S_CNT}, s{S_TMP+2}, 1")
        a(f"s_lshl_b32 s{S_CNT}, s{S_CNT}, 11")
        a(f"s_add_u32 s{S_T0}, s{S_T0}, s{S_CNT}")
        a(f"s_and_b32 s{S_CNT}, s{S_TMP+2}, 1")
        a(f"s_lshl_b32 s{S_CNT}, s{S_CNT}, 9")
        a(f"s_add_u32 s{S_T0}, s{S_T0}, s{S_CNT}")
        a(f"s_add_u32 s{S_T0}, s{S_T0}, {B2F + 64*2048:#x}")
        b = 64 + 8 * i
        for p in range(4):
            a(f"v_perm_b32 v{10+p}, v{b+2*p+1}, v{b+2*p}, s{S_TMP+6}")
        for p in range(4):
            a(f"v_perm_b32 v{b+p}, v{b+2*p+1}, v{b+2*p}, s{S_TMP+5}")
        for p in range(4):
            a(f"v_mov_b32 v{b+4+p}, v{10+p}")
        a(f"buffer_store_dwordx4 {vr(b,4)}, v2, s[{RW}:{RW+3}], s{S_T0} offen")
        a(f"buffer_store_dwordx4 {vr(b+4,4)}, v2, s[{RW}:{RW+3}], s{S_T0} offen offset:16")
    a("s_waitcnt vmcnt(31)")
    a(f"v_lshlrev_b32 v3, 4, v{V_LANE}")
    a(f"v_add_u32 v4, 4096, v3")
    for i in range(32):
        a(f"v_xor_b32 v{128+i}, s{S_M0}, v{128+i}")
    for i in range(8):
        off = i * 1024
        a(f"buffer_store_dwordx4 {vr(128+4*i,4)}, v{3 if off < 4096 else 4}, s[{RW}:{RW+3}], s{S_SLOT} offen offset:{off & 4095}")
    a("s_waitcnt vmcnt(22)")
    for i in range(16):
        a(f"v_mov_b32 v{20+i}, 0")
    for d in range(4):
        for i in range(16):
            a(f"v_dot2_f32_bf16 v{20+i}, v{160+4*i+d}, v{16+d}, v{20+i}")
    a(f"s_mul_i32 s{S_CNT}, s{S_WID}, 4352")
    a(f"v_lshlrev_b32 v10, 2, v{V_LANE}")
    a(f"v_add_u32 v10, s{S_CNT}, v10")
    a("s_nop 1")
    for i in range(16):
        a(f"ds_write_b32 v10, v{20+i} offset:{i*272}")
    a(f"v_lshrrev_b32 v7, 2, v{V_LANE}")
    a(f"v_mul_u32_u24 v11, 272, v7")
    a(f"v_and_b32 v12, 3, v{V_LANE}")
    a(f"v_lshl_add_u32 v11, v12, 6, v11")
    a(f"v_add_u32 v11, s{S_CNT}, v11")
    a("s_waitcnt lgkmcnt(0)")
    for i in range(4):
        a(f"ds_read_b128 {vr(36+4*i,4)}, v11 offset:{i*16}")
    a("s_waitcnt lgkmcnt(0)")
    for i in range(8):
        a(f"v_add_f32 v{36+i}, v{36+i}, v{44+i}")
    for i in range(4):
        a(f"v_add_f32 v{36+i}, v{36+i}, v{40+i}")
    a("v_add_f32 v36, v36, v38")
    a("v_add_f32 v37, v37, v39")
    a("v_add_f32 v10, v36, v37")
    a("s_nop 1")
    a("v_add_f32 v10, v10, v10 quad_perm:[1,0,3,2] row_mask:0xf bank_mask:0xf")
    a("s_nop 1")
    a("v_add_f32 v10, v10, v10 quad_perm:[2,3,0,1] row_mask:0xf bank_mask:0xf")
    a("v_mul_f32 v10, 0xbfb8aa3b, v10")
    a("v_exp_f32 v10, v10")
    a("s_nop 0")
    a("v_add_f32 v10, 1.0, v10")
    a("v_rcp_f32 v10, v10")
    a(f"s_lshl_b32 s{S_CNT}, s{AW}, 4")
    a(f"v_add_u32 v7, s{S_CNT}, v7")
    a(f"v_lshlrev_b32 v11, 2, v7")
    a(f"v_add_u32 v11, {GATE:#x}, v11")
    a(f"buffer_store_dword v10, v11, s[{RW}:{RW+3}], 0 offen")
    prof_end(a, cfg, P_WS, S_WID, 0)
    a("s_endpgm")

def stage1(a, cfg):
    a(f".globl {K1}")
    a(".p2align 8")
    a(f".type {K1},@function")
    a.label(K1)
    a("s_cmp_ge_u32 s2, 256")
    a("s_cbranch_scc1 S1_exit")
    prof_start(a, cfg)
    a("s_load_dwordx16 s[16:31], s[0:1], 0")
    a("s_load_dwordx8 s[32:39], s[0:1], 64")
    a("s_load_dwordx2 s[40:41], s[0:1], 96")
    a("v_lshrrev_b32 v1, 6, v0")
    a(f"v_and_b32 v{V_LANE}, 63, v0")
    a(f"v_readfirstlane_b32 s{S_WID}, v1")
    a(f"s_and_b32 s{S_XCD}, s2, 7")
    a(f"s_lshr_b32 s{S_IDX}, s2, 3")
    a("s_waitcnt lgkmcnt(0)")
    if cfg.get("onlyA"):
        a(f"s_cmp_ge_u32 s{S_IDX}, 16")
        a("s_cbranch_scc1 S1_exit")
    a(f"s_cmp_ge_u32 s{S_IDX}, 30")
    a("s_cbranch_scc1 S1_aux")
    srd(a, R_O, P_WS, A2F_SIZE)
    a(f"s_cmp_ge_u32 s{S_IDX}, 16")
    a("s_cbranch_scc1 S1_typeB")
    a(f"s_lshl_b32 s{S_TMP}, s{S_XCD}, 2")
    a(f"s_lshr_b32 s{S_TMP+1}, s{S_IDX}, 2")
    a(f"s_add_u32 s{S_TMP}, s{S_TMP}, s{S_TMP+1}")
    a(f"s_and_b32 s{S_TMP+1}, s{S_IDX}, 3")
    a(f"s_mov_b32 s{S_ROT}, s{S_TMP}")
    a(f"s_lshr_b32 s{S_K0}, s{S_IDX}, 2")
    a(f"s_add_u32 s{S_K0}, s{S_K0}, s{S_TMP+1}")
    a(f"s_and_b32 s{S_K0}, s{S_K0}, 3")
    a(f"s_lshl_b32 s{S_K0}, s{S_K0}, 3")
    a(f"s_cmp_ge_u32 s{S_TMP}, 16")
    a(f"s_cselect_b32 s{S_TMP+2}, s{P_CI}, s{P_CR}")
    a(f"s_cselect_b32 s{S_TMP+3}, s{P_CI+1}, s{P_CR+1}")
    a(f"s_cselect_b32 s{S_TMP+4}, 32, 0")
    srd(a, R_T, S_TMP+2, 2048*2048*2)
    srd(a, R_M1, P_AX, 2048*512*2)
    a(f"s_and_b32 s{S_TMP}, s{S_TMP}, 15")
    a(f"s_lshl_b32 s{S_T0}, s{S_TMP}, 19")
    a(f"s_lshl_b32 s{S_M0}, s{S_TMP+1}, 8")
    a(f"s_mul_i32 s{S_OBASE}, s{S_TMP}, {2*TT_STRIDE}")
    a(f"s_lshl_b32 s{S_TMP+1}, s{S_TMP+1}, 3")
    a(f"s_add_u32 s{S_TMP+1}, s{S_TMP+1}, s{S_TMP+4}")
    a(f"s_lshl_b32 s{S_TMP+1}, s{S_TMP+1}, 11")
    a(f"s_add_u32 s{S_OBASE}, s{S_OBASE}, s{S_TMP+1}")
    SEC = cfg.get("sec", 128)
    VJ = 239
    PDC = cfg.get("pdc", 2)
    R_P = 60 + 20
    R_P = 96
    S_PO, S_PC, S_PS = 76, 77, 78
    VP = 238
    def touch_step(a):
        lab = a.newlabel("Tt")
        a(f"s_cmp_eq_u32 s{S_PC}, 0")
        a(f"s_cbranch_scc1 {lab}")
        a(f"buffer_load_dword v{VJ}, v{VP}, s[{R_P}:{R_P+3}], s{S_PO} offen{' nt' if cfg.get('nt',0) & 8 else ''}")
        a(f"s_add_u32 s{S_PO}, s{S_PO}, s{S_PS}")
        a(f"s_sub_u32 s{S_PC}, s{S_PC}, 1")
        a.label(lab)
    CH = cfg.get("ch", 8)
    TPH = cfg.get("tph", 0)
    def touchX(a, where):
        if where != "init":
            return
        a(f"v_lshrrev_b32 v{V_TMP}, 3, v{V_LANE}")
        a(f"s_lshl_b32 s{S_TMP+2}, s{S_IDX}, 3")
        a(f"v_add_u32 v{V_TMP+3}, s{S_TMP+2}, v{V_TMP}")
        a(f"v_lshlrev_b32 v{V_TMP+3}, 10, v{V_TMP+3}")
        a(f"v_and_b32 v{V_TMP+2}, 7, v{V_LANE}")
        a(f"v_lshl_add_u32 v{V_TMP+3}, v{V_TMP+2}, 7, v{V_TMP+3}")
        a(f"s_lshl_b32 s{S_TMP+2}, s{S_WID}, 17")
        for c in range(4):
            a(f"buffer_load_dword v{VJ}, v{V_TMP+3}, s[{R_M1}:{R_M1+3}], s{S_TMP+2} offen")
            if c < 3:
                a(f"s_add_u32 s{S_TMP+2}, s{S_TMP+2}, {4*128*1024}")
    PDP = cfg.get("pdp", 2)
    def touchXC(a, where):
        if where == "init":
            touchX(a, where)
            a(f"v_bfe_u32 v{V_TMP}, v{V_LANE}, 1, 3")
            a(f"s_lshr_b32 s{S_TMP+2}, s{S_M0}, 3")
            a(f"s_lshl_b32 s{S_TMP+3}, s{S_WID}, 3")
            a(f"s_add_u32 s{S_TMP+2}, s{S_TMP+2}, s{S_TMP+3}")
            a(f"v_add_u32 v{V_TMP+1}, s{S_TMP+2}, v{V_TMP}")
            a(f"v_lshlrev_b32 v{V_TMP+1}, 12, v{V_TMP+1}")
            a(f"v_and_b32 v{V_TMP+2}, 1, v{V_LANE}")
            a(f"v_lshl_add_u32 v{VP}, v{V_TMP+2}, 7, v{V_TMP+1}")
            a(f"s_add_u32 s{S_PO}, s{S_T0}, {3*128}")
            a(f"s_mov_b32 s{S_PC}, 15")
            for c in range(PDP):
                tstep(a)
        elif where == "loop0":
            tstep(a)
    def tstep(a):
        lab = a.newlabel("Tc")
        a(f"s_cmp_eq_u32 s{S_PC}, 0")
        a(f"s_cbranch_scc1 {lab}")
        a(f"buffer_load_dword v{VJ}, v{VP}, s[{R_T}:{R_T+3}], s{S_PO} offen nt")
        a(f"s_add_u32 s{S_PO}, s{S_PO}, 256")
        a(f"s_sub_u32 s{S_PC}, s{S_PC}, 1")
        a.label(lab)
    def touchA(a, where):
        NI = CH // 4
        def step(a):
            lab = a.newlabel("Tt")
            a(f"s_cmp_eq_u32 s{S_PC}, 0")
            a(f"s_cbranch_scc1 {lab}")
            for i in range(NI):
                a(f"buffer_load_dword v{VJ}, v{VP}, s[{R_P}:{R_P+3}], s{S_PO} offen{' nt' if cfg.get('nt',0) & 8 else ''}")
                a(f"s_add_u32 s{S_PO}, s{S_PO}, s{S_PS}")
            a(f"s_add_u32 s{S_PO}, s{S_PO}, s{S_PS+1}")
            a(f"s_sub_u32 s{S_PC}, s{S_PC}, 1")
            a.label(lab)
        if where == "init":
            lab = a.newlabel("TAi")
            a(f"s_cmp_ge_u32 s{S_WID}, 2")
            a(f"s_cbranch_scc1 {lab}")
            for i in range(4):
                a(f"s_mov_b32 s{R_P+i}, s{R_T+i}")
            a(f"v_lshrrev_b32 v{V_TMP}, 2, v{V_LANE}")
            a(f"s_lshr_b32 s{S_TMP+2}, s{S_M0}, 3")
            a(f"s_lshl_b32 s{S_TMP+3}, s{S_WID}, 4")
            a(f"s_add_u32 s{S_TMP+2}, s{S_TMP+2}, s{S_TMP+3}")
            a(f"v_add_u32 v{V_TMP+1}, s{S_TMP+2}, v{V_TMP}")
            a(f"v_lshlrev_b32 v{V_TMP+1}, 12, v{V_TMP+1}")
            a(f"v_and_b32 v{V_TMP+2}, 3, v{V_LANE}")
            a(f"v_lshl_add_u32 v{VP}, v{V_TMP+2}, 7, v{V_TMP+1}")
            a(f"s_mov_b32 s{S_PO}, s{S_T0}")
            a(f"s_mov_b32 s{S_PS}, 512")
            a(f"s_mov_b32 s{S_PS+1}, 0")
            a(f"s_branch {lab}e")
            a.label(lab)
            for i in range(4):
                a(f"s_mov_b32 s{R_P+i}, s{R_M1+i}")
            a(f"s_lshl_b32 s{S_TMP+2}, s{S_IDX}, 7")
            a(f"s_sub_u32 s{S_TMP+3}, s{S_WID}, 2")
            a(f"s_lshl_b32 s{S_TMP+3}, s{S_TMP+3}, 6")
            a(f"s_add_u32 s{S_TMP+2}, s{S_TMP+2}, s{S_TMP+3}")
            a(f"v_add_u32 v{V_TMP}, s{S_TMP+2}, v{V_LANE}")
            a(f"v_lshlrev_b32 v{VP}, 7, v{V_TMP}")
            a(f"s_mov_b32 s{S_PO}, 0")
            a(f"s_mov_b32 s{S_PS}, {256*1024}")
            a(f"s_mov_b32 s{S_PS+1}, 0")
            a.label(lab + "e")
            a(f"s_mov_b32 s{S_PC}, {32//CH}")
            for c in range(PDC):
                step(a)
        elif where == "loop0":
            lab = a.newlabel("TAt")
            a(f"s_sub_u32 s{S_TMP+2}, 16, s{S_CNT}")
            a(f"s_and_b32 s{S_TMP+2}, s{S_TMP+2}, {CH//2-1}")
            a(f"s_cmp_lg_u32 s{S_TMP+2}, {TPH}")
            a(f"s_cbranch_scc1 {lab}")
            step(a)
            a.label(lab)
    gemm_role(a, "TA", NM=1, LA=cfg.get("LA_A", 2), S=4, nK=32, njobs=1, pitchT=4096, pitchM=1024, cfg=cfg, touch=(touchXC if cfg.get('xhot') == 2 else touchX if cfg.get('xhot') else touchA))
    a.label("S1_typeB")
    srd(a, R_T, P_AX, 2048*512*2)
    srd(a, R_M1, P_WG, 512*1792*2)
    srd(a, R_M2, P_WU, 512*1792*2)
    a(f"s_sub_u32 s{S_TMP+1}, s{S_IDX}, 16")
    a(f"s_lshl_b32 s{S_TMP+1}, s{S_TMP+1}, 1")
    a(f"s_mul_i32 s{S_TMP+2}, s{S_XCD}, 28")
    a(f"s_add_u32 s{S_TMP+2}, s{S_TMP+2}, s{S_TMP+1}")
    a(f"s_lshr_b32 s{S_TMP+1}, s{S_TMP+2}, 4")
    a(f"s_and_b32 s{S_TMP+2}, s{S_TMP+2}, 15")
    a(f"s_mov_b32 s{S_ROT}, s{S_TMP+2}")
    a(f"s_lshr_b32 s{S_K0}, s{S_TMP+2}, 1")
    if cfg.get("cbmul", 0):
        a(f"s_mul_i32 s{S_TMP+3}, s{S_TMP+1}, {cfg['cbmul']}")
        a(f"s_add_u32 s{S_K0}, s{S_K0}, s{S_TMP+3}")
        a(f"s_and_b32 s{S_K0}, s{S_K0}, 7")
    a(f"s_lshl_b32 s{S_T0}, s{S_TMP+2}, 17")
    a(f"s_lshl_b32 s{S_M0}, s{S_TMP+1}, 8")
    a(f"s_mul_i32 s{S_OBASE}, s{S_TMP+2}, {2*TT_STRIDE}")
    a(f"s_lshl_b32 s{S_TMP+1}, s{S_TMP+1}, 3")
    a(f"s_add_u32 s{S_TMP+1}, s{S_TMP+1}, 64")
    a(f"s_lshl_b32 s{S_TMP+1}, s{S_TMP+1}, 11")
    a(f"s_add_u32 s{S_OBASE}, s{S_OBASE}, s{S_TMP+1}")
    PDB = cfg.get("pdb", 3)
    def touchB(a, where):
        if where == "init":
            lab = a.newlabel("TBi")
            a(f"s_cmp_ge_u32 s{S_WID}, 2")
            a(f"s_cbranch_scc1 {lab}")
            for i in range(4):
                a(f"s_mov_b32 s{R_P+i}, s{R_T+i}")
            a(f"s_lshl_b32 s{S_TMP+2}, s{S_WID}, 6")
            a(f"v_add_u32 v{V_TMP}, s{S_TMP+2}, v{V_LANE}")
            a(f"v_lshlrev_b32 v{VP}, 10, v{V_TMP}")
            a(f"s_add_u32 s{S_PO}, s{S_T0}, 256")
            a(f"s_mov_b32 s{S_PS}, 128")
            a(f"s_mov_b32 s{S_PC}, 14")
            a(f"s_branch {lab}e")
            a.label(lab)
            a(f"s_cmp_eq_u32 s{S_WID}, 2")
            for i in range(4):
                a(f"s_cselect_b32 s{R_P+i}, s{R_M1+i}, s{R_M2+i}")
            a(f"s_lshr_b32 s{S_TMP+2}, s{S_ROT}, 1")
            a(f"s_lshl_b32 s{S_TMP+2}, s{S_TMP+2}, 3")
            a(f"v_bfe_u32 v{V_TMP}, v{V_LANE}, 1, 3")
            a(f"v_add_u32 v{V_TMP}, s{S_TMP+2}, v{V_TMP}")
            a(f"v_mul_u32_u24 v{V_TMP}, 3584, v{V_TMP}")
            a(f"v_and_b32 v{V_TMP+1}, 1, v{V_LANE}")
            a(f"v_lshl_add_u32 v{VP}, v{V_TMP+1}, 7, v{V_TMP}")
            a(f"s_add_u32 s{S_PO}, s{S_M0}, {2*64*3584}")
            a(f"s_mov_b32 s{S_PS}, {64*3584}")
            a(f"s_mov_b32 s{S_PC}, 6")
            a.label(lab + "e")
            for c in range(PDB):
                touch_step(a)
        else:
            lab = a.newlabel("TBj")
            a(f"s_cmp_lg_u32 s{S_PC}, 8")
            a(f"s_cbranch_scc1 {lab}")
            a(f"s_add_u32 s{S_PO}, s{S_PO}, {131072 - 1024}")
            a.label(lab)
            touch_step(a)
    gemm_role(a, "TB", NM=2, LA=1, S=3, nK=8, njobs=2, pitchT=1024, pitchM=3584, cfg=cfg, touch=((lambda a, w: None) if cfg.get('xhot') else touchB))
    a.label("S1_aux")
    aux_role(a, cfg)
    a.label("S1_exit")
    a("s_endpgm")

def stage2(a, cfg):
    D = cfg.get("D2", 8)
    a(f".globl {K2}")
    a(".p2align 8")
    a(f".type {K2},@function")
    a.label(K2)
    a("s_cmp_ge_u32 s2, 256")
    a("s_cbranch_scc1 S2_exit")
    prof_start(a, cfg)
    a("s_load_dwordx2 s[4:5], s[0:1], 80")
    a("s_load_dwordx2 s[6:7], s[0:1], 96")
    a("v_lshrrev_b32 v1, 6, v0")
    a("v_and_b32 v200, 63, v0")
    a("v_readfirstlane_b32 s3, v1")
    a("s_and_b32 s8, s2, 7")
    a("s_lshr_b32 s9, s2, 3")
    a("s_lshl_b32 s10, s8, 2")
    a("s_lshr_b32 s11, s9, 3")
    a("s_add_u32 s10, s10, s11")
    a("s_and_b32 s11, s9, 7")
    a("s_waitcnt lgkmcnt(0)")
    srd(a, 12, 6, A2F_SIZE)
    srd(a, 16, 6, B2F_SIZE, off=B2F)
    srd(a, 20, 6, GATE_SIZE, off=GATE)
    srd(a, 24, 4, 2048*512*2)
    a("v_lshlrev_b32 v201, 4, v200")
    a("v_and_b32 v202, 31, v200")
    a("s_lshl_b32 s28, s10, 6")
    a("v_add_u32 v202, s28, v202")
    a("v_lshlrev_b32 v202, 2, v202")
    a("buffer_load_dword v204, v202, s[20:23], 0 offen")
    a("buffer_load_dword v205, v202, s[20:23], 0 offen offset:128")
    a(f"s_mul_i32 s28, s10, {TT_STRIDE}")
    a(f"s_mul_i32 s29, s11, {TT_STRIDE}")
    a("s_lshl_b32 s30, s3, 15")
    a(f"s_mul_i32 s31, s3, {28*2048}")
    a(f"s_add_u32 s31, s31, {64*2048}")
    a("s_add_u32 s32, s28, s30")
    a("s_add_u32 s33, s29, s30")
    a("s_add_u32 s34, s28, s31")
    a("s_add_u32 s35, s29, s31")
    if cfg.get("touch2", 1):
        SEC = cfg.get("sec", 128)
        srd(a, 36, 6, GATE)
        a("v_lshlrev_b32 v203, 7, v200")
        a("s_lshl_b32 s40, s9, 2")
        a("s_add_u32 s40, s40, s3")
        for i in range(5):
            lab = a.newlabel("S2t")
            a(f"s_add_u32 s41, s40, {128*i}")
            if i == 4:
                a("s_cmp_ge_u32 s41, 528")
                a(f"s_cbranch_scc1 {lab}")
            a("s_lshr_b32 s42, s41, 4")
            a("s_and_b32 s43, s41, 15")
            a("s_sub_u32 s44, s41, 192")
            a(f"s_mul_hi_u32 s45, s44, {(2**32 + 27)//28}")
            a("s_mul_i32 s46, s45, 28")
            a("s_sub_u32 s46, s44, s46")
            a("s_add_u32 s46, s46, 16")
            a("s_cmp_lt_u32 s41, 192")
            a("s_cselect_b32 s42, s42, s45")
            a("s_cselect_b32 s43, s43, s46")
            a("s_lshl_b32 s44, s8, 2")
            a("s_cmp_lt_u32 s42, 4")
            a("s_cselect_b32 s44, s44, 28")
            a("s_add_u32 s44, s44, s42")
            a(f"s_mul_i32 s44, s44, {TT_STRIDE}")
            a("s_lshl_b32 s43, s43, 13")
            a("s_add_u32 s44, s44, s43")
            for h in range(128 // SEC):
                a(f"buffer_load_dword v207, v203, s[36:39], s44 offen offset:{h*64}")
            a.label(lab)
    for i in range(128):
        a(f"v_mov_b32 v{i}, 0")
    NS = 44
    rot2 = cfg.get("rot2", 1)
    a("s_lshr_b32 s38, s9, 3")
    if rot2:
        a("s_lshl_b32 s36, s11, 1")
        a("s_lshl_b32 s39, s38, 2")
        a("s_add_u32 s36, s36, s39")
        a("s_and_b32 s36, s36, 15")
        a("s_lshl_b32 s36, s36, 11")
        a("s_mul_i32 s37, s11, 7")
        a("s_lshr_b32 s37, s37, 1")
        a("s_mul_i32 s39, s38, 7")
        a("s_add_u32 s37, s37, s39")
        a("s_cmp_ge_u32 s37, 28")
        a("s_cselect_b32 s39, 28, 0")
        a("s_sub_u32 s37, s37, s39")
        a("s_lshl_b32 s37, s37, 11")
    else:
        a("s_mov_b32 s36, 0")
        a("s_mov_b32 s37, 0")
    def load(i):
        if i == 16:
            a("s_mov_b32 s32, s34")
            a("s_mov_b32 s33, s35")
            a("s_mov_b32 s36, s37")
        n = 16 if i < 16 else 28
        b = (i % D) * 16
        a("s_add_u32 s42, s32, s36")
        a("s_add_u32 s43, s33, s36")
        f2 = " nt" if cfg.get("nt", 0) & 64 else ""
        a(f"buffer_load_dwordx4 {ar(b,4)}, v201, s[12:15], s42 offen{f2}")
        a(f"buffer_load_dwordx4 {ar(b+4,4)}, v201, s[12:15], s42 offen offset:1024{f2}")
        a(f"buffer_load_dwordx4 {ar(b+8,4)}, v201, s[16:19], s43 offen{f2}")
        a(f"buffer_load_dwordx4 {ar(b+12,4)}, v201, s[16:19], s43 offen offset:1024{f2}")
        a("s_add_u32 s36, s36, 2048")
        a(f"s_cmp_eq_u32 s36, {n*2048}")
        a("s_cselect_b32 s36, 0, s36")
    for i in range(D):
        load(i)
    for i in range(NS):
        out = min(D - 1, NS - 1 - i)
        a(f"s_waitcnt vmcnt({out*4})")
        b = (i % D) * 16
        base = 0 if i < 16 else 64
        for mi in range(2):
            for ni in range(2):
                d = vr(base + (mi * 2 + ni) * 16, 16)
                a(f"v_mfma_f32_32x32x16_bf16 {d}, {ar(b+8+4*mi,4)}, {ar(b+4*ni,4)}, {d}")
        if i + D < NS:
            load(i + D)
    a("s_nop 15")
    a("s_nop 3")
    for mi in range(2):
        for ni in range(2):
            for r in range(16):
                y = (mi * 2 + ni) * 16 + r
                a(f"v_sub_f32 v{y}, v{y}, v{64+y}")
                a(f"v_fma_f32 v{y}, v{y}, v{204+ni}, v{64+y}")
    PIT = 272
    WSZ = 64 * PIT
    a("v_and_b32 v202, 31, v200")
    a(f"v_mul_u32_u24 v202, {PIT}, v202")
    a("v_lshrrev_b32 v203, 5, v200")
    a("v_lshl_add_u32 v202, v203, 4, v202")
    a(f"s_mul_i32 s28, s3, {WSZ}")
    a("v_add_u32 v202, s28, v202")
    for mi in range(2):
        for ni in range(2):
            for q in range(4):
                src = (mi * 2 + ni) * 16 + 4 * q
                off = ni * 32 * PIT + (mi * 32 + 8 * q) * 4
                a(f"ds_write_b128 v202, {vr(src,4)} offset:{off}")
    a("s_waitcnt lgkmcnt(0)")
    a("s_barrier")
    a("s_lshl_b32 s28, s3, 6")
    a("v_add_u32 v203, s28, v200")
    a("v_lshrrev_b32 v206, 2, v203")
    a("v_and_b32 v207, 3, v203")
    a(f"v_mul_u32_u24 v208, {PIT}, v206")
    a("v_lshl_add_u32 v208, v207, 6, v208")
    for w in range(4):
        for q in range(4):
            a(f"ds_read_b128 {vr(w*16+q*4,4)}, v208 offset:{w*WSZ + q*16}")
    a("s_waitcnt lgkmcnt(0)")
    for i in range(16):
        a(f"v_add_f32 v{i}, v{i}, v{16+i}")
        a(f"v_add_f32 v{32+i}, v{32+i}, v{48+i}")
    for i in range(16):
        a(f"v_add_f32 v{i}, v{i}, v{32+i}")
    for i in range(8):
        a(f"v_cvt_pk_bf16_f32 v{64+i}, v{2*i}, v{2*i+1}")
    a("s_lshl_b32 s28, s10, 16")
    a("s_lshl_b32 s29, s11, 7")
    a("s_add_u32 s28, s28, s29")
    a("v_lshlrev_b32 v206, 10, v206")
    a("v_lshl_add_u32 v206, v207, 5, v206")
    a("buffer_store_dwordx4 v[64:67], v206, s[24:27], s28 offen")
    a("buffer_store_dwordx4 v[68:71], v206, s[24:27], s28 offen offset:16")
    prof_end(a, cfg, 6, 3, 1)
    a.label("S2_exit")
    a("s_endpgm")
    return D * 16

def build(cfg):
    a = Asm()
    stage1(a, cfg)
    nacc = stage2(a, cfg)
    lds1 = 3 * 49152
    lds2 = 4 * 64 * 272
    out = HEADER
    out += f"; @launch kernel={K1} grid=(256,1,1) block=(512,1,1) lds={lds1}\n"
    out += f"; @launch kernel={K2} grid=(256,1,1) block=(256,1,1) lds={lds2}\n"
    out += '.amdgcn_target "amdgcn-amd-amdhsa--gfx950"\n.text\n'
    out += a.text()
    out += f""".section .rodata,"a"
.p2align 6
.amdhsa_kernel {K1}
  .amdhsa_next_free_vgpr 256
  .amdhsa_next_free_sgpr 100
  .amdhsa_accum_offset 256
  .amdhsa_group_segment_fixed_size 0
  .amdhsa_kernarg_size 104
  .amdhsa_user_sgpr_count 2
  .amdhsa_user_sgpr_kernarg_segment_ptr 1
  .amdhsa_system_sgpr_workgroup_id_x 1
.end_amdhsa_kernel
.p2align 6
.amdhsa_kernel {K2}
  .amdhsa_next_free_vgpr {256 + nacc}
  .amdhsa_next_free_sgpr 96
  .amdhsa_accum_offset 256
  .amdhsa_group_segment_fixed_size 0
  .amdhsa_kernarg_size 104
  .amdhsa_user_sgpr_count 2
  .amdhsa_user_sgpr_kernarg_segment_ptr 1
  .amdhsa_system_sgpr_workgroup_id_x 1
.end_amdhsa_kernel
"""
    return out

if __name__ == "__main__":
    cfg = {}
    outp = sys.argv[1] if len(sys.argv) > 1 else "gated_mix__spectral_fnet__glu_gated_glu__prompt.s"
    for kv in sys.argv[2:]:
        k, v = kv.split("=")
        cfg[k] = int(v)
    open(outp, "w").write(build(cfg))
    print("wrote", outp)
```

```python
import sys
from gen import Asm, vr, ar, sr, srd, HEADER, K1, K2, A2F, TT_STRIDE, A2F_SIZE, B2F, B2F_SIZE, GATE, GATE_SIZE, PROF, prof_start, prof_end

S_WID = 3
S_XCD, S_IDX = 4, 5
P_AX, P_CR, P_CI, P_HR, P_HI, P_BX, P_WG, P_WU = 16, 18, 20, 22, 24, 26, 28, 30
P_WD, P_GW, P_OUT, P_DBG, P_WS = 32, 34, 36, 38, 40
R_T, R_M1, R_M2, R_O = 44, 48, 52, 56
S_T0, S_M0 = 60, 61
S_SLOT = 62
S_CNT = 63
S_LW = 64
S_LSLOT = 65
S_TMP = 66
S_OBASE = 74
S_K0 = 75
S_KT = 76
S_TO, S_MO = 77, 78
V_LANE = 250
V_TMP = 240
ACC, FR, VT0, VM0, VLT, VLM, VO, VT = 0, 128, 192, 196, 200, 204, 208, 224

class G:
    def __init__(s, a, cfg, tag, NM, LA, S, pitchT, pitchM):
        s.a, s.cfg, s.tag, s.NM, s.LA, s.S, s.pitchT, s.pitchM = a, cfg, tag, NM, LA, S, pitchT, pitchM
        s.SB = 16384 * (1 + NM)
        s.DPT = 4 * (1 + NM)
        s.nsets = 4 if LA >= 2 else 2
        s.R = 2 + NM * 4
        s.SETSZ = 8 + NM * 8
    def setup_compute(s):
        a = s.a
        a(f"s_bfe_u32 s{S_TMP}, s{S_WID}, 0x10001")
        a(f"s_and_b32 s{S_TMP+1}, s{S_WID}, 1")
        a(f"v_and_b32 v{V_TMP}, 31, v{V_LANE}")
        a(f"v_lshrrev_b32 v{V_TMP+1}, 5, v{V_LANE}")
        a(f"v_bfe_u32 v{V_TMP+2}, v{V_LANE}, 1, 3")
        a(f"v_xor_b32 v{V_TMP+1}, v{V_TMP+1}, v{V_TMP+2}")
        a(f"v_lshlrev_b32 v{V_TMP+1}, 4, v{V_TMP+1}")
        a(f"v_lshl_add_u32 v{V_TMP}, v{V_TMP}, 7, v{V_TMP+1}")
        a(f"s_lshl_b32 s{S_TMP+2}, s{S_TMP}, 13")
        a(f"v_add_u32 v{VT0}, s{S_TMP+2}, v{V_TMP}")
        for j in range(1, 4):
            a(f"v_xor_b32 v{VT0+j}, {32*j}, v{VT0}")
        a(f"v_bfe_u32 v{V_TMP}, v{V_LANE}, 2, 2")
        a(f"v_lshrrev_b32 v{V_TMP+1}, 5, v{V_LANE}")
        a(f"v_lshl_add_u32 v{V_TMP+1}, v{V_TMP+1}, 3, v{V_TMP}")
        a(f"v_lshlrev_b32 v{V_TMP+1}, 8, v{V_TMP+1}")
        a(f"v_bfe_u32 v{V_TMP+2}, v{V_LANE}, 4, 1")
        a(f"v_lshl_add_u32 v{V_TMP+1}, v{V_TMP+2}, 5, v{V_TMP+1}")
        a(f"v_and_b32 v{V_TMP+2}, 3, v{V_LANE}")
        a(f"v_lshl_add_u32 v{V_TMP+1}, v{V_TMP+2}, 3, v{V_TMP+1}")
        a(f"v_add_u32 v{V_TMP+1}, 16384, v{V_TMP+1}")
        a(f"s_lshl_b32 s{S_TMP+2}, s{S_TMP+1}, 1")
        for mi in range(2):
            a(f"s_add_u32 s{S_TMP+3}, s{S_TMP+2}, {mi}")
            a(f"v_xor_b32 v{V_TMP+2}, s{S_TMP+3}, v{V_TMP}")
            a(f"v_lshl_add_u32 v{VM0+mi}, v{V_TMP+2}, 6, v{V_TMP+1}")
        a(f"s_mul_i32 s{S_TMP+2}, s{S_TMP}, {TT_STRIDE}")
        a(f"s_lshl_b32 s{S_TMP+3}, s{S_TMP+1}, 13")
        a(f"s_add_u32 s{S_TMP+2}, s{S_TMP+2}, s{S_TMP+3}")
        a(f"v_lshlrev_b32 v{VO}, 4, v{V_LANE}")
        a(f"v_add_u32 v{VO}, s{S_TMP+2}, v{VO}")
        a(f"v_add_u32 v{VO+1}, 4096, v{VO}")
    def setup_loader(s):
        a = s.a
        a(f"s_and_b32 s{S_TMP}, s{S_WID}, 3")
        a(f"s_lshl_b32 s{S_LW}, s{S_TMP}, 12")
        a(f"v_lshrrev_b32 v{V_TMP}, 3, v{V_LANE}")
        a(f"s_lshl_b32 s{S_TMP+1}, s{S_TMP}, 5")
        a(f"v_add_u32 v{V_TMP}, s{S_TMP+1}, v{V_TMP}")
        a(f"v_and_b32 v{V_TMP+1}, 7, v{V_LANE}")
        a(f"v_lshrrev_b32 v{V_TMP+2}, 4, v{V_LANE}")
        a(f"v_xor_b32 v{V_TMP+1}, v{V_TMP+1}, v{V_TMP+2}")
        for i in range(4):
            a(f"v_add_u32 v{V_TMP+3}, {8*i}, v{V_TMP}")
            a(f"v_mul_u32_u24 v{V_TMP+3}, {s.pitchT}, v{V_TMP+3}")
            a(f"v_xor_b32 v{V_TMP+4}, {(i&1)*4}, v{V_TMP+1}")
            a(f"v_lshl_add_u32 v{VLT+i}, v{V_TMP+4}, 4, v{V_TMP+3}")
        a(f"v_lshrrev_b32 v{V_TMP}, 4, v{V_LANE}")
        a(f"v_lshlrev_b32 v{V_TMP+2}, 2, v{V_TMP}")
        a(f"v_and_b32 v{V_TMP+1}, 15, v{V_LANE}")
        a(f"v_xor_b32 v{V_TMP+1}, v{V_TMP+1}, v{V_TMP+2}")
        a(f"s_lshl_b32 s{S_TMP+1}, s{S_TMP}, 4")
        a(f"v_add_u32 v{V_TMP}, s{S_TMP+1}, v{V_TMP}")
        for i in range(4):
            a(f"v_add_u32 v{V_TMP+3}, {4*i}, v{V_TMP}")
            a(f"v_mul_u32_u24 v{V_TMP+3}, {s.pitchM}, v{V_TMP+3}")
            a(f"v_lshl_add_u32 v{VLM+i}, v{V_TMP+1}, 4, v{V_TMP+3}")
    def next_slot(s, reg):
        a = s.a
        a(f"s_add_u32 s{reg}, s{reg}, {s.SB}")
        a(f"s_cmp_eq_u32 s{reg}, {s.S*s.SB}")
        a(f"s_cselect_b32 s{reg}, 0, s{reg}")
    def issue(s, sT, sM):
        a = s.a
        a(f"s_add_u32 s{S_TMP+2}, s{S_LSLOT}, s{S_LW}")
        for i in range(4):
            a(f"s_add_u32 m0, s{S_TMP+2}, {i*1024}")
            a("s_nop 0")
            a(f"buffer_load_dwordx4 v{VLT+i}, s[{R_T}:{R_T+3}], s{sT} offen lds")
        for m in range(s.NM):
            rm = R_M1 if m == 0 else R_M2
            for i in range(4):
                a(f"s_add_u32 m0, s{S_TMP+2}, {16384*(1+m) + i*1024}")
                a("s_nop 0")
                a(f"buffer_load_dwordx4 v{VLM+i}, s[{rm}:{rm+3}], s{sM} offen lds")
        s.next_slot(S_LSLOT)
    def tfrag(s, st, ni): return FR + st * s.SETSZ + ni * 4
    def mfrag(s, st, m, mi): return FR + st * s.SETSZ + 8 + (m * 2 + mi) * 4
    def acc(s, m, mi, ni): return ACC + ((m * 2 + mi) * 2 + ni) * 16
    def reads(s, j, st, aset):
        out = []
        vt = VT + aset * 6
        vm = vt + 4
        for ni in range(2):
            out.append(f"ds_read_b128 {vr(s.tfrag(st, ni), 4)}, v{vt+j} offset:{ni*4096}")
        for m in range(s.NM):
            for mi in range(2):
                for q in range(2):
                    out.append(f"ds_read_b64_tr_b16 {vr(s.mfrag(st, m, mi)+2*q, 2)}, v{vm+mi} offset:{m*16384 + j*4096 + q*1024}")
        return out
    def mfmas(s, st):
        out = []
        for m in range(s.NM):
            for mi in range(2):
                for ni in range(2):
                    d = vr(s.acc(m, mi, ni), 16)
                    out.append(f"v_mfma_f32_32x32x16_bf16 {d}, {vr(s.mfrag(st, m, mi), 4)}, {vr(s.tfrag(st, ni), 4)}, {d}")
        return out
    def set_addr(s, aset):
        vt = VT + aset * 6
        return [f"v_add_u32 v{vt+j}, s{S_SLOT}, v{VT0+j}" for j in range(4)] + [f"v_add_u32 v{vt+4+mi}, s{S_SLOT}, v{VM0+mi}" for mi in range(2)]
    def interleave(s, mf, rd, extra=()):
        a = s.a
        rd = list(rd) + list(extra)
        n = len(mf)
        per = (len(rd) + n - 1) // n if rd else 0
        ri = 0
        for m in mf:
            a(m)
            k = 0
            while ri < len(rd) and k < per:
                a(rd[ri]); ri += 1; k += 1
        while ri < len(rd):
            a(rd[ri]); ri += 1
    def compute_job(s, nK, pre_wait=None, loop_wait=None):
        a, LA, R, nsets = s.a, s.LA, s.R, s.nsets
        for i in range(s.NM * 64):
            a(f"v_mov_b32 v{ACC+i}, 0")
        for x in s.set_addr(0):
            a(x)
        if pre_wait: a(pre_wait)
        a("s_barrier")
        for s_ in range(LA):
            for r_ in s.reads(s_, s_ % nsets, 0):
                a(r_)
        a(f"s_mov_b32 s{S_CNT}, {nK//2}")
        L_loop = a.newlabel(f"{s.tag}_cl"); L_last = a.newlabel(f"{s.tag}_cz")
        def tile(aset, last):
            for j in range(4):
                extra = []
                if j == 0 and not last:
                    s.next_slot(S_SLOT)
                    extra = s.set_addr(aset ^ 1)
                if j == 4 - LA and not last:
                    a("s_waitcnt lgkmcnt(0)" + (" " + loop_wait if loop_wait else ""))
                    a("s_barrier")
                else:
                    if j + LA < 4 or not last:
                        a(f"s_waitcnt lgkmcnt({(LA-1)*R})")
                    else:
                        a(f"s_waitcnt lgkmcnt({min(3-j, LA-1)*R})")
                if j + LA < 4:
                    rd = s.reads(j + LA, (j + LA) % nsets, aset)
                elif not last:
                    rd = s.reads((j + LA) % 4, (j + LA) % nsets, aset ^ 1)
                else:
                    rd = []
                s.interleave(s.mfmas(j % nsets), rd, extra)
        a.label(L_loop)
        tile(0, False)
        a(f"s_sub_u32 s{S_CNT}, s{S_CNT}, 1")
        a(f"s_cmp_eq_u32 s{S_CNT}, 0")
        a(f"s_cbranch_scc1 {L_last}")
        tile(1, False)
        a(f"s_branch {L_loop}")
        a.label(L_last)
        tile(1, True)
        a("s_nop 15")
        a("s_nop 3")
    def store_half(s, src16, mi, ni, b, tmp):
        a = s.a
        for h in range(2):
            g_ = 2 * b + h
            a(f"v_cvt_pk_bf16_f32 v{tmp+2*h}, v{src16+4*g_}, v{src16+4*g_+1}")
            a(f"v_cvt_pk_bf16_f32 v{tmp+2*h+1}, v{src16+4*g_+2}, v{src16+4*g_+3}")
        a("s_nop 1")
        a(f"v_permlane32_swap_b32 v{tmp}, v{tmp+2}")
        a(f"v_permlane32_swap_b32 v{tmp+1}, v{tmp+3}")
        off = (mi * 2 + b) * 2048 + ni * 1024
        a(f"buffer_store_dwordx4 {vr(tmp,4)}, v{VO + (off >= 4096)}, s[{R_O}:{R_O+3}], s{S_OBASE} offen offset:{off & 4095}")
    def glu_half(s, mi, ni, b):
        a = s.a
        g_ = s.acc(0, mi, ni) + 8 * b; u_ = s.acc(1, mi, ni) + 8 * b
        for i in range(0, 8, 2):
            a(f"v_pk_mul_f32 {vr(g_+i,2)}, {vr(g_+i,2)}, s[{S_TMP+4}:{S_TMP+5}]")
        for i in range(8):
            a(f"v_exp_f32 v{g_+i}, v{g_+i}")
        for i in range(0, 8, 2):
            a(f"v_pk_add_f32 {vr(g_+i,2)}, {vr(g_+i,2)}, s[{S_TMP+6}:{S_TMP+7}]")
        for i in range(8):
            a(f"v_rcp_f32 v{g_+i}, v{g_+i}")
        for i in range(0, 8, 2):
            a(f"v_pk_mul_f32 {vr(g_+i,2)}, {vr(g_+i,2)}, {vr(u_+i,2)}")
        s.store_half(s.acc(0, mi, ni), mi, ni, b, FR + 32 + ((mi * 2 + ni) * 2 + b) * 4)
    def glu_const(s):
        a = s.a
        a(f"s_mov_b32 s{S_TMP+4}, 0xbfb8aa3b")
        a(f"s_mov_b32 s{S_TMP+5}, 0xbfb8aa3b")
        a(f"s_mov_b32 s{S_TMP+6}, 1.0")
        a(f"s_mov_b32 s{S_TMP+7}, 1.0")

def typeA(a, cfg):
    g = G(a, cfg, "TA", 1, cfg.get("LA_A", 2), 4, 4096, 1024)
    nK = 32
    a(f"s_cmp_ge_u32 s{S_WID}, 4")
    a("s_cbranch_scc1 TA_loader")
    g.setup_compute()
    a(f"s_mov_b32 s{S_SLOT}, 0")
    g.compute_job(nK)
    for mi in range(2):
        for ni in range(2):
            for b in range(2):
                g.store_half(g.acc(0, mi, ni), mi, ni, b, FR + 32 + ((mi * 2 + ni) * 2 + b) * 4)
    a("s_branch TA_end")
    a.label("TA_loader")
    g.setup_loader()
    a(f"s_mov_b32 s{S_LSLOT}, 0")
    lat = cfg.get("lat", 0); LG = 4
    a(f"s_mov_b32 s{S_KT}, 0")
    def issue():
        if lat:
            a(f"s_add_u32 s{S_TMP+3}, s{S_KT}, s{S_K0}")
            a(f"s_and_b32 s{S_TMP+3}, s{S_TMP+3}, {LG-1}")
            a(f"s_andn2_b32 s{S_TMP+4}, s{S_KT}, {LG-1}")
            a(f"s_or_b32 s{S_TMP+3}, s{S_TMP+3}, s{S_TMP+4}")
            a(f"s_add_u32 s{S_KT}, s{S_KT}, 1")
            a(f"s_lshl_b32 s{S_TMP+4}, s{S_TMP+3}, 7")
            a(f"s_add_u32 s{S_TO}, s{S_T0}, s{S_TMP+4}")
            a(f"s_lshl_b32 s{S_TMP+4}, s{S_TMP+3}, 16")
            a(f"s_add_u32 s{S_MO}, s{S_M0}, s{S_TMP+4}")
            g.issue(S_TO, S_MO)
        else:
            g.issue(S_T0, S_M0)
            a(f"s_add_u32 s{S_T0}, s{S_T0}, 128")
            a(f"s_add_u32 s{S_M0}, s{S_M0}, 65536")
    for t in range(3):
        issue()
    a(f"s_mov_b32 s{S_CNT}, {nK-3}")
    a.label("TA_ll")
    a(f"s_waitcnt vmcnt({2*g.DPT})")
    a("s_barrier")
    issue()
    a(f"s_sub_u32 s{S_CNT}, s{S_CNT}, 1")
    a(f"s_cmp_lg_u32 s{S_CNT}, 0")
    a("s_cbranch_scc1 TA_ll")
    for t in range(3):
        a(f"s_waitcnt vmcnt({(2-t)*g.DPT})")
        a("s_barrier")
    a.label("TA_end")
    prof_end(a, cfg, P_WS, S_WID, 0)
    a("s_endpgm")

def typeB(a, cfg):
    g = G(a, cfg, "TB", 2, 1, 3, 1024, 3584)
    nK = 8
    SB, DPT = g.SB, g.DPT
    g.setup_compute()
    g.setup_loader()
    g.glu_const()
    a(f"s_cmp_ge_u32 s{S_WID}, 4")
    a("s_cbranch_scc1 TB_g1")
    def adv(t):
        if t % nK == nK - 1:
            a(f"s_add_u32 s{S_T0}, s{S_T0}, {128*1024 - (nK-1)*128}")
            a(f"s_sub_u32 s{S_M0}, s{S_M0}, {(nK-1)*64*3584}")
        else:
            a(f"s_add_u32 s{S_T0}, s{S_T0}, 128")
            a(f"s_add_u32 s{S_M0}, s{S_M0}, {64*3584}")
    a(f"s_mov_b32 s{S_SLOT}, 0")
    g.compute_job(nK)
    a(f"s_add_u32 s{S_T0}, s{S_T0}, {128*1024 + 2*128}")
    a(f"s_add_u32 s{S_M0}, s{S_M0}, {2*64*3584}")
    a(f"s_mov_b32 s{S_LSLOT}, {(10 % 3)*SB}")
    chunks = [(mi, ni, b) for mi in range(2) for ni in range(2) for b in range(2)]
    for t in range(8, 16):
        if t >= 10:
            newer = (DPT if t + 1 <= 15 else 0) + 1
            a(f"s_waitcnt vmcnt({newer})")
        a("s_barrier")
        if t + 2 <= 15:
            g.issue(S_T0, S_M0)
            adv(t + 2)
        g.glu_half(*chunks[t - 8])
    a("s_branch TB_end")
    a.label("TB_g1")
    a(f"s_mov_b32 s{S_LSLOT}, 0")
    obase_saved = False
    for t in range(2):
        g.issue(S_T0, S_M0); adv(t)
    a(f"s_mov_b32 s{S_CNT}, 5")
    a.label("TB_ll")
    a(f"s_waitcnt vmcnt({DPT})")
    a("s_barrier")
    g.issue(S_T0, S_M0); adv(2)
    a(f"s_sub_u32 s{S_CNT}, s{S_CNT}, 1")
    a(f"s_cmp_lg_u32 s{S_CNT}, 0")
    a("s_cbranch_scc1 TB_ll")
    for t in range(5, 8):
        a(f"s_waitcnt vmcnt({DPT})")
        a("s_barrier")
        g.issue(S_T0, S_M0); adv(t + 2)
    a(f"s_add_u32 s{S_OBASE}, s{S_OBASE}, {2*TT_STRIDE}")
    a(f"s_mov_b32 s{S_SLOT}, {(8 % 3)*SB}")
    g.compute_job(nK, pre_wait=f"s_waitcnt vmcnt({DPT})", loop_wait="vmcnt(0)")
    for c in chunks:
        g.glu_half(*c)
    a.label("TB_end")
    prof_end(a, cfg, P_WS, S_WID, 0)
    a("s_endpgm")

import gen
def stage1(a, cfg):
    a(f".globl {K1}")
    a(".p2align 8")
    a(f".type {K1},@function")
    a.label(K1)
    a("s_cmp_ge_u32 s2, 256")
    a("s_cbranch_scc1 S1_exit")
    prof_start(a, cfg)
    a("s_load_dwordx16 s[16:31], s[0:1], 0")
    a("s_load_dwordx8 s[32:39], s[0:1], 64")
    a("s_load_dwordx2 s[40:41], s[0:1], 96")
    a("v_lshrrev_b32 v1, 6, v0")
    a(f"v_and_b32 v{V_LANE}, 63, v0")
    a(f"v_readfirstlane_b32 s{S_WID}, v1")
    a(f"s_and_b32 s{S_XCD}, s2, 7")
    a(f"s_lshr_b32 s{S_IDX}, s2, 3")
    a("s_waitcnt lgkmcnt(0)")
    a(f"s_cmp_ge_u32 s{S_IDX}, 30")
    a("s_cbranch_scc1 S1_aux")
    srd(a, R_O, P_WS, A2F_SIZE)
    a(f"s_cmp_ge_u32 s{S_IDX}, 16")
    a("s_cbranch_scc1 S1_typeB")
    a(f"s_lshl_b32 s{S_TMP}, s{S_XCD}, 2")
    a(f"s_lshr_b32 s{S_TMP+1}, s{S_IDX}, 2")
    a(f"s_add_u32 s{S_TMP}, s{S_TMP}, s{S_TMP+1}")
    a(f"s_and_b32 s{S_TMP+1}, s{S_IDX}, 3")
    a(f"s_lshr_b32 s{S_K0}, s{S_IDX}, 2")
    a(f"s_add_u32 s{S_K0}, s{S_K0}, s{S_TMP+1}")
    a(f"s_and_b32 s{S_K0}, s{S_K0}, 3")
    a(f"s_cmp_ge_u32 s{S_TMP}, 16")
    a(f"s_cselect_b32 s{S_TMP+2}, s{P_CI}, s{P_CR}")
    a(f"s_cselect_b32 s{S_TMP+3}, s{P_CI+1}, s{P_CR+1}")
    a(f"s_cselect_b32 s{S_TMP+4}, 32, 0")
    srd(a, R_T, S_TMP+2, 2048*2048*2)
    srd(a, R_M1, P_AX, 2048*512*2)
    a(f"s_and_b32 s{S_TMP}, s{S_TMP}, 15")
    a(f"s_lshl_b32 s{S_T0}, s{S_TMP}, 19")
    a(f"s_lshl_b32 s{S_M0}, s{S_TMP+1}, 8")
    a(f"s_mul_i32 s{S_OBASE}, s{S_TMP}, {2*TT_STRIDE}")
    a(f"s_lshl_b32 s{S_TMP+1}, s{S_TMP+1}, 3")
    a(f"s_add_u32 s{S_TMP+1}, s{S_TMP+1}, s{S_TMP+4}")
    a(f"s_lshl_b32 s{S_TMP+1}, s{S_TMP+1}, 11")
    a(f"s_add_u32 s{S_OBASE}, s{S_OBASE}, s{S_TMP+1}")
    typeA(a, cfg)
    a.label("S1_typeB")
    srd(a, R_T, P_AX, 2048*512*2)
    srd(a, R_M1, P_WG, 512*1792*2)
    srd(a, R_M2, P_WU, 512*1792*2)
    a(f"s_sub_u32 s{S_TMP+1}, s{S_IDX}, 16")
    a(f"s_lshl_b32 s{S_TMP+1}, s{S_TMP+1}, 1")
    a(f"s_mul_i32 s{S_TMP+2}, s{S_XCD}, 28")
    a(f"s_add_u32 s{S_TMP+2}, s{S_TMP+2}, s{S_TMP+1}")
    a(f"s_lshr_b32 s{S_TMP+1}, s{S_TMP+2}, 4")
    a(f"s_and_b32 s{S_TMP+2}, s{S_TMP+2}, 15")
    a(f"s_lshl_b32 s{S_T0}, s{S_TMP+2}, 17")
    a(f"s_lshl_b32 s{S_M0}, s{S_TMP+1}, 8")
    a(f"s_mul_i32 s{S_OBASE}, s{S_TMP+2}, {2*TT_STRIDE}")
    a(f"s_lshl_b32 s{S_TMP+1}, s{S_TMP+1}, 3")
    a(f"s_add_u32 s{S_TMP+1}, s{S_TMP+1}, 64")
    a(f"s_lshl_b32 s{S_TMP+1}, s{S_TMP+1}, 11")
    a(f"s_add_u32 s{S_OBASE}, s{S_OBASE}, s{S_TMP+1}")
    typeB(a, cfg)
    a.label("S1_aux")
    gen.aux_role(a, cfg)
    a.label("S1_exit")
    a("s_endpgm")

def build(cfg):
    cfg.setdefault("touch2", 0); cfg.setdefault("rot2", 0)
    a = Asm()
    stage1(a, cfg)
    nacc = gen.stage2(a, cfg)
    lds1 = 3 * 49152
    lds2 = 4 * 64 * 272
    out = HEADER
    out += f"; @launch kernel={K1} grid=(256,1,1) block=(512,1,1) lds={lds1}\n"
    out += f"; @launch kernel={K2} grid=(256,1,1) block=(256,1,1) lds={lds2}\n"
    out += '.amdgcn_target "amdgcn-amd-amdhsa--gfx950"\n.text\n'
    out += a.text()
    out += f""".section .rodata,"a"
.p2align 6
.amdhsa_kernel {K1}
  .amdhsa_next_free_vgpr 256
  .amdhsa_next_free_sgpr 100
  .amdhsa_accum_offset 256
  .amdhsa_group_segment_fixed_size 0
  .amdhsa_kernarg_size 104
  .amdhsa_user_sgpr_count 2
  .amdhsa_user_sgpr_kernarg_segment_ptr 1
  .amdhsa_system_sgpr_workgroup_id_x 1
.end_amdhsa_kernel
.p2align 6
.amdhsa_kernel {K2}
  .amdhsa_next_free_vgpr {256 + nacc}
  .amdhsa_next_free_sgpr 96
  .amdhsa_accum_offset 256
  .amdhsa_group_segment_fixed_size 0
  .amdhsa_kernarg_size 104
  .amdhsa_user_sgpr_count 2
  .amdhsa_user_sgpr_kernarg_segment_ptr 1
  .amdhsa_system_sgpr_workgroup_id_x 1
.end_amdhsa_kernel
"""
    return out

if __name__ == "__main__":
    cfg = {}
    outp = sys.argv[1]
    for kv in sys.argv[2:]:
        k, v = kv.split("=")
        cfg[k] = int(v)
    open(outp, "w").write(build(cfg))
    print("wrote", outp)
```

```python
import sys
from gen import Asm, vr, ar, sr, srd, HEADER, K1, K2, A2F, TT_STRIDE, A2F_SIZE, B2F, B2F_SIZE, GATE, GATE_SIZE, PROF, prof_start, prof_end

S_WID = 3
S_XCD, S_IDX = 4, 5
P_AX, P_CR, P_CI, P_HR, P_HI, P_BX, P_WG, P_WU = 16, 18, 20, 22, 24, 26, 28, 30
P_WD, P_GW, P_OUT, P_DBG, P_WS = 32, 34, 36, 38, 40
R_T, R_M1, R_M2, R_O = 44, 48, 52, 56
S_T0, S_M0 = 60, 61
S_SLOT = 62
S_CNT = 63
S_LW = 64
S_LSLOT = 65
S_TMP = 66
S_OBASE = 74
S_K0 = 75
S_KT = 76
S_TO, S_MO = 77, 78
V_LANE = 250
V_TMP = 240
ACC, FR, VT0, VM0, VLT, VLM, VO, VT = 0, 128, 192, 196, 200, 204, 208, 224

class G:
    def __init__(s, a, cfg, tag, NM, LA, S, pitchT, pitchM):
        s.a, s.cfg, s.tag, s.NM, s.LA, s.S, s.pitchT, s.pitchM = a, cfg, tag, NM, LA, S, pitchT, pitchM
        s.SB = 16384 * (1 + NM)
        s.DPT = 4 * (1 + NM)
        s.nsets = 4 if LA >= 2 else 2
        s.R = 2 + NM * 4
        s.SETSZ = 8 + NM * 8
    def setup_compute(s):
        a = s.a
        a(f"s_bfe_u32 s{S_TMP}, s{S_WID}, 0x10001")
        a(f"s_and_b32 s{S_TMP+1}, s{S_WID}, 1")
        a(f"v_and_b32 v{V_TMP}, 31, v{V_LANE}")
        a(f"v_lshrrev_b32 v{V_TMP+1}, 5, v{V_LANE}")
        a(f"v_bfe_u32 v{V_TMP+2}, v{V_LANE}, 1, 3")
        a(f"v_xor_b32 v{V_TMP+1}, v{V_TMP+1}, v{V_TMP+2}")
        a(f"v_lshlrev_b32 v{V_TMP+1}, 4, v{V_TMP+1}")
        a(f"v_lshl_add_u32 v{V_TMP}, v{V_TMP}, 7, v{V_TMP+1}")
        a(f"s_lshl_b32 s{S_TMP+2}, s{S_TMP}, 13")
        a(f"v_add_u32 v{VT0}, s{S_TMP+2}, v{V_TMP}")
        for j in range(1, 4):
            a(f"v_xor_b32 v{VT0+j}, {32*j}, v{VT0}")
        a(f"v_bfe_u32 v{V_TMP}, v{V_LANE}, 2, 2")
        a(f"v_lshrrev_b32 v{V_TMP+1}, 5, v{V_LANE}")
        a(f"v_lshl_add_u32 v{V_TMP+1}, v{V_TMP+1}, 3, v{V_TMP}")
        a(f"v_lshlrev_b32 v{V_TMP+1}, 8, v{V_TMP+1}")
        a(f"v_bfe_u32 v{V_TMP+2}, v{V_LANE}, 4, 1")
        a(f"v_lshl_add_u32 v{V_TMP+1}, v{V_TMP+2}, 5, v{V_TMP+1}")
        a(f"v_and_b32 v{V_TMP+2}, 3, v{V_LANE}")
        a(f"v_lshl_add_u32 v{V_TMP+1}, v{V_TMP+2}, 3, v{V_TMP+1}")
        a(f"v_add_u32 v{V_TMP+1}, 16384, v{V_TMP+1}")
        a(f"s_lshl_b32 s{S_TMP+2}, s{S_TMP+1}, 1")
        for mi in range(2):
            a(f"s_add_u32 s{S_TMP+3}, s{S_TMP+2}, {mi}")
            a(f"v_xor_b32 v{V_TMP+2}, s{S_TMP+3}, v{V_TMP}")
            a(f"v_lshl_add_u32 v{VM0+mi}, v{V_TMP+2}, 6, v{V_TMP+1}")
        a(f"s_mul_i32 s{S_TMP+2}, s{S_TMP}, {TT_STRIDE}")
        a(f"s_lshl_b32 s{S_TMP+3}, s{S_TMP+1}, 13")
        a(f"s_add_u32 s{S_TMP+2}, s{S_TMP+2}, s{S_TMP+3}")
        a(f"v_lshlrev_b32 v{VO}, 4, v{V_LANE}")
        a(f"v_add_u32 v{VO}, s{S_TMP+2}, v{VO}")
        a(f"v_add_u32 v{VO+1}, 4096, v{VO}")
    def setup_loader(s):
        a = s.a
        a(f"s_and_b32 s{S_TMP}, s{S_WID}, 3")
        a(f"s_lshl_b32 s{S_LW}, s{S_TMP}, 12")
        a(f"v_lshrrev_b32 v{V_TMP}, 3, v{V_LANE}")
        a(f"s_lshl_b32 s{S_TMP+1}, s{S_TMP}, 5")
        a(f"v_add_u32 v{V_TMP}, s{S_TMP+1}, v{V_TMP}")
        a(f"v_and_b32 v{V_TMP+1}, 7, v{V_LANE}")
        a(f"v_lshrrev_b32 v{V_TMP+2}, 4, v{V_LANE}")
        a(f"v_xor_b32 v{V_TMP+1}, v{V_TMP+1}, v{V_TMP+2}")
        for i in range(4):
            a(f"v_add_u32 v{V_TMP+3}, {8*i}, v{V_TMP}")
            a(f"v_mul_u32_u24 v{V_TMP+3}, {s.pitchT}, v{V_TMP+3}")
            a(f"v_xor_b32 v{V_TMP+4}, {(i&1)*4}, v{V_TMP+1}")
            a(f"v_lshl_add_u32 v{VLT+i}, v{V_TMP+4}, 4, v{V_TMP+3}")
        a(f"v_lshrrev_b32 v{V_TMP}, 4, v{V_LANE}")
        a(f"v_lshlrev_b32 v{V_TMP+2}, 2, v{V_TMP}")
        a(f"v_and_b32 v{V_TMP+1}, 15, v{V_LANE}")
        a(f"v_xor_b32 v{V_TMP+1}, v{V_TMP+1}, v{V_TMP+2}")
        a(f"s_lshl_b32 s{S_TMP+1}, s{S_TMP}, 4")
        a(f"v_add_u32 v{V_TMP}, s{S_TMP+1}, v{V_TMP}")
        for i in range(4):
            a(f"v_add_u32 v{V_TMP+3}, {4*i}, v{V_TMP}")
            a(f"v_mul_u32_u24 v{V_TMP+3}, {s.pitchM}, v{V_TMP+3}")
            a(f"v_lshl_add_u32 v{VLM+i}, v{V_TMP+1}, 4, v{V_TMP+3}")
    def next_slot(s, reg):
        a = s.a
        a(f"s_add_u32 s{reg}, s{reg}, {s.SB}")
        a(f"s_cmp_eq_u32 s{reg}, {s.S*s.SB}")
        a(f"s_cselect_b32 s{reg}, 0, s{reg}")
    def issue(s, sT, sM):
        a = s.a
        a(f"s_add_u32 s{S_TMP+2}, s{S_LSLOT}, s{S_LW}")
        for i in range(4):
            a(f"s_add_u32 m0, s{S_TMP+2}, {i*1024}")
            a("s_nop 0")
            a(f"buffer_load_dwordx4 v{VLT+i}, s[{R_T}:{R_T+3}], s{sT} offen lds")
        for m in range(s.NM):
            rm = R_M1 if m == 0 else R_M2
            for i in range(4):
                a(f"s_add_u32 m0, s{S_TMP+2}, {16384*(1+m) + i*1024}")
                a("s_nop 0")
                a(f"buffer_load_dwordx4 v{VLM+i}, s[{rm}:{rm+3}], s{sM} offen lds")
        s.next_slot(S_LSLOT)
    def tfrag(s, st, ni): return FR + st * s.SETSZ + ni * 4
    def mfrag(s, st, m, mi): return FR + st * s.SETSZ + 8 + (m * 2 + mi) * 4
    def acc(s, m, mi, ni): return ACC + ((m * 2 + mi) * 2 + ni) * 16
    def reads(s, j, st, aset):
        out = []
        vt = VT + aset * 6
        vm = vt + 4
        for ni in range(2):
            out.append(f"ds_read_b128 {vr(s.tfrag(st, ni), 4)}, v{vt+j} offset:{ni*4096}")
        for m in range(s.NM):
            for mi in range(2):
                for q in range(2):
                    out.append(f"ds_read_b64_tr_b16 {vr(s.mfrag(st, m, mi)+2*q, 2)}, v{vm+mi} offset:{m*16384 + j*4096 + q*1024}")
        return out
    def mfmas(s, st):
        out = []
        for m in range(s.NM):
            for mi in range(2):
                for ni in range(2):
                    d = vr(s.acc(m, mi, ni), 16)
                    out.append(f"v_mfma_f32_32x32x16_bf16 {d}, {vr(s.mfrag(st, m, mi), 4)}, {vr(s.tfrag(st, ni), 4)}, {d}")
        return out
    def set_addr(s, aset):
        vt = VT + aset * 6
        return [f"v_add_u32 v{vt+j}, s{S_SLOT}, v{VT0+j}" for j in range(4)] + [f"v_add_u32 v{vt+4+mi}, s{S_SLOT}, v{VM0+mi}" for mi in range(2)]
    def interleave(s, mf, rd, extra=()):
        a = s.a
        rd = list(rd) + list(extra)
        n = len(mf)
        per = (len(rd) + n - 1) // n if rd else 0
        ri = 0
        for m in mf:
            a(m)
            k = 0
            while ri < len(rd) and k < per:
                a(rd[ri]); ri += 1; k += 1
        while ri < len(rd):
            a(rd[ri]); ri += 1
    def compute_job(s, nK, pre_wait=None, loop_wait=None):
        a, LA, R, nsets = s.a, s.LA, s.R, s.nsets
        for i in range(s.NM * 64):
            a(f"v_mov_b32 v{ACC+i}, 0")
        for x in s.set_addr(0):
            a(x)
        if pre_wait: a(pre_wait)
        a("s_barrier")
        for s_ in range(LA):
            for r_ in s.reads(s_, s_ % nsets, 0):
                a(r_)
        a(f"s_mov_b32 s{S_CNT}, {nK//2}")
        L_loop = a.newlabel(f"{s.tag}_cl"); L_last = a.newlabel(f"{s.tag}_cz")
        def tile(aset, last):
            for j in range(4):
                extra = []
                if j == 0 and not last:
                    s.next_slot(S_SLOT)
                    extra = s.set_addr(aset ^ 1)
                if j == 4 - LA and not last:
                    a("s_waitcnt lgkmcnt(0)" + (" " + loop_wait if loop_wait else ""))
                    a("s_barrier")
                else:
                    if j + LA < 4 or not last:
                        a(f"s_waitcnt lgkmcnt({(LA-1)*R})")
                    else:
                        a(f"s_waitcnt lgkmcnt({min(3-j, LA-1)*R})")
                if j + LA < 4:
                    rd = s.reads(j + LA, (j + LA) % nsets, aset)
                elif not last:
                    rd = s.reads((j + LA) % 4, (j + LA) % nsets, aset ^ 1)
                else:
                    rd = []
                s.interleave(s.mfmas(j % nsets), rd, extra)
        a.label(L_loop)
        tile(0, False)
        a(f"s_sub_u32 s{S_CNT}, s{S_CNT}, 1")
        a(f"s_cmp_eq_u32 s{S_CNT}, 0")
        a(f"s_cbranch_scc1 {L_last}")
        tile(1, False)
        a(f"s_branch {L_loop}")
        a.label(L_last)
        tile(1, True)
        a("s_nop 15")
        a("s_nop 3")
    def store_half(s, src16, mi, ni, b, tmp):
        a = s.a
        for h in range(2):
            g_ = 2 * b + h
            a(f"v_cvt_pk_bf16_f32 v{tmp+2*h}, v{src16+4*g_}, v{src16+4*g_+1}")
            a(f"v_cvt_pk_bf16_f32 v{tmp+2*h+1}, v{src16+4*g_+2}, v{src16+4*g_+3}")
        a("s_nop 1")
        a(f"v_permlane32_swap_b32 v{tmp}, v{tmp+2}")
        a(f"v_permlane32_swap_b32 v{tmp+1}, v{tmp+3}")
        off = (mi * 2 + b) * 2048 + ni * 1024
        a(f"buffer_store_dwordx4 {vr(tmp,4)}, v{VO + (off >= 4096)}, s[{R_O}:{R_O+3}], s{S_OBASE} offen offset:{off & 4095}")
    def glu_half(s, mi, ni, b):
        a = s.a
        g_ = s.acc(0, mi, ni) + 8 * b; u_ = s.acc(1, mi, ni) + 8 * b
        for i in range(0, 8, 2):
            a(f"v_pk_mul_f32 {vr(g_+i,2)}, {vr(g_+i,2)}, s[{S_TMP+4}:{S_TMP+5}]")
        for i in range(8):
            a(f"v_exp_f32 v{g_+i}, v{g_+i}")
        for i in range(0, 8, 2):
            a(f"v_pk_add_f32 {vr(g_+i,2)}, {vr(g_+i,2)}, s[{S_TMP+6}:{S_TMP+7}]")
        for i in range(8):
            a(f"v_rcp_f32 v{g_+i}, v{g_+i}")
        for i in range(0, 8, 2):
            a(f"v_pk_mul_f32 {vr(g_+i,2)}, {vr(g_+i,2)}, {vr(u_+i,2)}")
        s.store_half(s.acc(0, mi, ni), mi, ni, b, FR + 32 + ((mi * 2 + ni) * 2 + b) * 4)
    def glu_const(s):
        a = s.a
        a(f"s_mov_b32 s{S_TMP+4}, 0xbfb8aa3b")
        a(f"s_mov_b32 s{S_TMP+5}, 0xbfb8aa3b")
        a(f"s_mov_b32 s{S_TMP+6}, 1.0")
        a(f"s_mov_b32 s{S_TMP+7}, 1.0")

def typeA(a, cfg):
    g = G(a, cfg, "TA", 1, cfg.get("LA_A", 2), 4, 4096, 1024)
    nK = 32
    a(f"s_cmp_ge_u32 s{S_WID}, 4")
    a("s_cbranch_scc1 TA_loader")
    g.setup_compute()
    a(f"s_mov_b32 s{S_SLOT}, 0")
    g.compute_job(nK)
    for mi in range(2):
        for ni in range(2):
            for b in range(2):
                g.store_half(g.acc(0, mi, ni), mi, ni, b, FR + 32 + ((mi * 2 + ni) * 2 + b) * 4)
    a("s_branch TA_end")
    a.label("TA_loader")
    g.setup_loader()
    a(f"s_mov_b32 s{S_LSLOT}, 0")
    lat = cfg.get("lat", 0); LG = 4
    a(f"s_mov_b32 s{S_KT}, 0")
    def issue():
        if lat:
            a(f"s_add_u32 s{S_TMP+3}, s{S_KT}, s{S_K0}")
            a(f"s_and_b32 s{S_TMP+3}, s{S_TMP+3}, {LG-1}")
            a(f"s_andn2_b32 s{S_TMP+4}, s{S_KT}, {LG-1}")
            a(f"s_or_b32 s{S_TMP+3}, s{S_TMP+3}, s{S_TMP+4}")
            a(f"s_add_u32 s{S_KT}, s{S_KT}, 1")
            a(f"s_lshl_b32 s{S_TMP+4}, s{S_TMP+3}, 7")
            a(f"s_add_u32 s{S_TO}, s{S_T0}, s{S_TMP+4}")
            a(f"s_lshl_b32 s{S_TMP+4}, s{S_TMP+3}, 16")
            a(f"s_add_u32 s{S_MO}, s{S_M0}, s{S_TMP+4}")
            g.issue(S_TO, S_MO)
        else:
            g.issue(S_T0, S_M0)
            a(f"s_add_u32 s{S_T0}, s{S_T0}, 128")
            a(f"s_add_u32 s{S_M0}, s{S_M0}, 65536")
    for t in range(3):
        issue()
    a(f"s_mov_b32 s{S_CNT}, {nK-3}")
    a.label("TA_ll")
    a(f"s_waitcnt vmcnt({2*g.DPT})")
    a("s_barrier")
    issue()
    a(f"s_sub_u32 s{S_CNT}, s{S_CNT}, 1")
    a(f"s_cmp_lg_u32 s{S_CNT}, 0")
    a("s_cbranch_scc1 TA_ll")
    for t in range(3):
        a(f"s_waitcnt vmcnt({(2-t)*g.DPT})")
        a("s_barrier")
    a.label("TA_end")
    prof_end(a, cfg, P_WS, S_WID, 0)
    dprof_end(a, cfg, P_DBG, 1)
    a("s_endpgm")

def typeB(a, cfg):
    g = G(a, cfg, "TB", 2, 1, 3, 1024, 3584)
    nK = 8
    SB, DPT = g.SB, g.DPT
    g.setup_compute()
    g.setup_loader()
    g.glu_const()
    a(f"s_cmp_ge_u32 s{S_WID}, 4")
    a("s_cbranch_scc1 TB_g1")
    def adv(t):
        if t % nK == nK - 1:
            a(f"s_add_u32 s{S_T0}, s{S_T0}, {128*1024 - (nK-1)*128}")
            a(f"s_sub_u32 s{S_M0}, s{S_M0}, {(nK-1)*64*3584}")
        else:
            a(f"s_add_u32 s{S_T0}, s{S_T0}, 128")
            a(f"s_add_u32 s{S_M0}, s{S_M0}, {64*3584}")
    a(f"s_mov_b32 s{S_SLOT}, 0")
    g.compute_job(nK)
    a(f"s_add_u32 s{S_T0}, s{S_T0}, {128*1024 + 2*128}")
    a(f"s_add_u32 s{S_M0}, s{S_M0}, {2*64*3584}")
    a(f"s_mov_b32 s{S_LSLOT}, {(10 % 3)*SB}")
    chunks = [(mi, ni, b) for mi in range(2) for ni in range(2) for b in range(2)]
    for t in range(8, 16):
        if t >= 10:
            newer = (DPT if t + 1 <= 15 else 0) + 1
            a(f"s_waitcnt vmcnt({newer})")
        a("s_barrier")
        if t + 2 <= 15:
            g.issue(S_T0, S_M0)
            adv(t + 2)
        g.glu_half(*chunks[t - 8])
    a("s_branch TB_end")
    a.label("TB_g1")
    a(f"s_mov_b32 s{S_LSLOT}, 0")
    obase_saved = False
    for t in range(2):
        g.issue(S_T0, S_M0); adv(t)
    a(f"s_mov_b32 s{S_CNT}, 5")
    a.label("TB_ll")
    a(f"s_waitcnt vmcnt({DPT})")
    a("s_barrier")
    g.issue(S_T0, S_M0); adv(2)
    a(f"s_sub_u32 s{S_CNT}, s{S_CNT}, 1")
    a(f"s_cmp_lg_u32 s{S_CNT}, 0")
    a("s_cbranch_scc1 TB_ll")
    for t in range(5, 8):
        a(f"s_waitcnt vmcnt({DPT})")
        a("s_barrier")
        g.issue(S_T0, S_M0); adv(t + 2)
    a(f"s_add_u32 s{S_OBASE}, s{S_OBASE}, {2*TT_STRIDE}")
    a(f"s_mov_b32 s{S_SLOT}, {(8 % 3)*SB}")
    g.compute_job(nK, pre_wait=f"s_waitcnt vmcnt({DPT})", loop_wait="vmcnt(0)")
    for c in chunks:
        g.glu_half(*c)
    a.label("TB_end")
    prof_end(a, cfg, P_WS, S_WID, 0)
    dprof_end(a, cfg, P_DBG, 2)
    a("s_endpgm")

import gen
def dprof_start(a, cfg):
    if cfg.get("dprof"):
        a("s_memrealtime s[80:81]")
def dprof_end(a, cfg, pdbg, word):
    if cfg.get("dprof"):
        a("s_memrealtime s[84:85]")
        a(f"s_mov_b32 s88, s{pdbg}")
        a(f"s_mov_b32 s89, s{pdbg+1}")
        a("s_mov_b32 s90, 256")
        a("s_mov_b32 s91, 0x00020000")
        a("s_waitcnt lgkmcnt(0)")
        a("s_and_b32 s80, s80, 0x7fffffff")
        a("s_and_b32 s84, s84, 0x7fffffff")
        a("s_sub_u32 s86, 0x7fffffff, s80")
        a("v_mov_b32 v252, s86")
        a("v_mov_b32 v253, s84")
        a("v_mov_b32 v251, 0")
        a("s_mov_b64 exec, 1")
        a("buffer_atomic_umax v252, v251, s[88:91], 0 offen")
        a(f"buffer_atomic_umax v253, v251, s[88:91], 0 offen offset:{word*4}")
def stage1(a, cfg):
    a(f".globl {K1}")
    a(".p2align 8")
    a(f".type {K1},@function")
    a.label(K1)
    a("s_cmp_ge_u32 s2, 256")
    a("s_cbranch_scc1 S1_exit")
    prof_start(a, cfg)
    dprof_start(a, cfg)
    a("s_load_dwordx16 s[16:31], s[0:1], 0")
    a("s_load_dwordx8 s[32:39], s[0:1], 64")
    a("s_load_dwordx2 s[40:41], s[0:1], 96")
    a("v_lshrrev_b32 v1, 6, v0")
    a(f"v_and_b32 v{V_LANE}, 63, v0")
    a(f"v_readfirstlane_b32 s{S_WID}, v1")
    a(f"s_and_b32 s{S_XCD}, s2, 7")
    a(f"s_lshr_b32 s{S_IDX}, s2, 3")
    a("s_waitcnt lgkmcnt(0)")
    a(f"s_cmp_ge_u32 s{S_IDX}, 30")
    a("s_cbranch_scc1 S1_aux")
    srd(a, R_O, P_WS, A2F_SIZE)
    a(f"s_cmp_ge_u32 s{S_IDX}, 16")
    a("s_cbranch_scc1 S1_typeB")
    a(f"s_lshl_b32 s{S_TMP}, s{S_XCD}, 2")
    a(f"s_lshr_b32 s{S_TMP+1}, s{S_IDX}, 2")
    a(f"s_add_u32 s{S_TMP}, s{S_TMP}, s{S_TMP+1}")
    a(f"s_and_b32 s{S_TMP+1}, s{S_IDX}, 3")
    a(f"s_lshr_b32 s{S_K0}, s{S_IDX}, 2")
    a(f"s_add_u32 s{S_K0}, s{S_K0}, s{S_TMP+1}")
    a(f"s_and_b32 s{S_K0}, s{S_K0}, 3")
    a(f"s_cmp_ge_u32 s{S_TMP}, 16")
    a(f"s_cselect_b32 s{S_TMP+2}, s{P_CI}, s{P_CR}")
    a(f"s_cselect_b32 s{S_TMP+3}, s{P_CI+1}, s{P_CR+1}")
    a(f"s_cselect_b32 s{S_TMP+4}, 32, 0")
    srd(a, R_T, S_TMP+2, 2048*2048*2)
    srd(a, R_M1, P_AX, 2048*512*2)
    a(f"s_and_b32 s{S_TMP}, s{S_TMP}, 15")
    a(f"s_lshl_b32 s{S_T0}, s{S_TMP}, 19")
    a(f"s_lshl_b32 s{S_M0}, s{S_TMP+1}, 8")
    a(f"s_mul_i32 s{S_OBASE}, s{S_TMP}, {2*TT_STRIDE}")
    a(f"s_lshl_b32 s{S_TMP+1}, s{S_TMP+1}, 3")
    a(f"s_add_u32 s{S_TMP+1}, s{S_TMP+1}, s{S_TMP+4}")
    a(f"s_lshl_b32 s{S_TMP+1}, s{S_TMP+1}, 11")
    a(f"s_add_u32 s{S_OBASE}, s{S_OBASE}, s{S_TMP+1}")
    typeA(a, cfg)
    a.label("S1_typeB")
    srd(a, R_T, P_AX, 2048*512*2)
    srd(a, R_M1, P_WG, 512*1792*2)
    srd(a, R_M2, P_WU, 512*1792*2)
    a(f"s_sub_u32 s{S_TMP+1}, s{S_IDX}, 16")
    a(f"s_lshl_b32 s{S_TMP+1}, s{S_TMP+1}, 1")
    a(f"s_mul_i32 s{S_TMP+2}, s{S_XCD}, 28")
    a(f"s_add_u32 s{S_TMP+2}, s{S_TMP+2}, s{S_TMP+1}")
    a(f"s_lshr_b32 s{S_TMP+1}, s{S_TMP+2}, 4")
    a(f"s_and_b32 s{S_TMP+2}, s{S_TMP+2}, 15")
    a(f"s_lshl_b32 s{S_T0}, s{S_TMP+2}, 17")
    a(f"s_lshl_b32 s{S_M0}, s{S_TMP+1}, 8")
    a(f"s_mul_i32 s{S_OBASE}, s{S_TMP+2}, {2*TT_STRIDE}")
    a(f"s_lshl_b32 s{S_TMP+1}, s{S_TMP+1}, 3")
    a(f"s_add_u32 s{S_TMP+1}, s{S_TMP+1}, 64")
    a(f"s_lshl_b32 s{S_TMP+1}, s{S_TMP+1}, 11")
    a(f"s_add_u32 s{S_OBASE}, s{S_OBASE}, s{S_TMP+1}")
    typeB(a, cfg)
    a.label("S1_aux")
    gen.aux_role(a, cfg)
    a.label("S1_exit")
    a("s_endpgm")

def build(cfg):
    cfg.setdefault("touch2", 0); cfg.setdefault("rot2", 0)
    a = Asm()
    stage1(a, cfg)
    nacc = gen.stage2(a, cfg)
    lds1 = 3 * 49152
    lds2 = 4 * 64 * 272
    out = HEADER
    out += f"; @launch kernel={K1} grid=(256,1,1) block=(512,1,1) lds={lds1}\n"
    out += f"; @launch kernel={K2} grid=(256,1,1) block=(256,1,1) lds={lds2}\n"
    out += '.amdgcn_target "amdgcn-amd-amdhsa--gfx950"\n.text\n'
    out += a.text()
    out += f""".section .rodata,"a"
.p2align 6
.amdhsa_kernel {K1}
  .amdhsa_next_free_vgpr 256
  .amdhsa_next_free_sgpr 100
  .amdhsa_accum_offset 256
  .amdhsa_group_segment_fixed_size 0
  .amdhsa_kernarg_size 104
  .amdhsa_user_sgpr_count 2
  .amdhsa_user_sgpr_kernarg_segment_ptr 1
  .amdhsa_system_sgpr_workgroup_id_x 1
.end_amdhsa_kernel
.p2align 6
.amdhsa_kernel {K2}
  .amdhsa_next_free_vgpr {256 + nacc}
  .amdhsa_next_free_sgpr 96
  .amdhsa_accum_offset 256
  .amdhsa_group_segment_fixed_size 0
  .amdhsa_kernarg_size 104
  .amdhsa_user_sgpr_count 2
  .amdhsa_user_sgpr_kernarg_segment_ptr 1
  .amdhsa_system_sgpr_workgroup_id_x 1
.end_amdhsa_kernel
"""
    return out

if __name__ == "__main__":
    cfg = {}
    outp = sys.argv[1]
    for kv in sys.argv[2:]:
        k, v = kv.split("=")
        cfg[k] = int(v)
    open(outp, "w").write(build(cfg))
    print("wrote", outp)
```

```python
import sys

HEADER = open("gated_mix__spectral_fnet__glu_gated_glu__prompt.s.ref").read().split("; Override launch geometry")[0]

K1 = "gated_mix__spectral_fnet__glu_gated_glu__prompt_kernel"
K2 = "gmix_stage2_kernel"

A2F = 0
TT_STRIDE = 176 * 2048
A2F_SIZE = 32 * TT_STRIDE
B2F = A2F_SIZE
B2F_SIZE = 8 * TT_STRIDE
GATE = B2F + B2F_SIZE
GATE_SIZE = 8192

class Asm:
    def __init__(self):
        self.l = []
        self.n = 0
    def __call__(self, s):
        self.l.append("    " + s)
    def label(self, s):
        self.l.append(s + ":")
    def c(self, s):
        self.l.append("    ; " + s)
    def newlabel(self, p="L"):
        self.n += 1
        return f"{p}_{self.n}"
    def text(self):
        return "\n".join(self.l) + "\n"

def vr(b, n=1):
    return f"v{b}" if n == 1 else f"v[{b}:{b+n-1}]"
def ar(b, n=1):
    return f"a{b}" if n == 1 else f"a[{b}:{b+n-1}]"
def sr(b, n=1):
    return f"s{b}" if n == 1 else f"s[{b}:{b+n-1}]"

def srd(a, dst, plo, size, off=None):
    if off:
        a(f"s_add_u32 s{dst}, s{plo}, {off:#x}")
        a(f"s_addc_u32 s{dst+1}, s{plo+1}, 0")
    else:
        a(f"s_mov_b32 s{dst}, s{plo}")
        a(f"s_mov_b32 s{dst+1}, s{plo+1}")
    a(f"s_mov_b32 s{dst+2}, {size:#x}")
    a(f"s_mov_b32 s{dst+3}, 0x00020000")

PROF = 0x1800000
def prof_start(a, cfg):
    if cfg.get("prof"):
        a("s_memrealtime s[80:81]")
        a("s_memtime s[82:83]")
def prof_end(a, cfg, pws, wid, stage):
    if cfg.get("prof"):
        a("s_memrealtime s[84:85]")
        a("s_memtime s[86:87]")
        a(f"s_add_u32 s88, s{pws}, {PROF + stage*0x10000:#x}")
        a(f"s_addc_u32 s89, s{pws+1}, 0")
        a("s_mov_b32 s90, 0x10000")
        a("s_mov_b32 s91, 0x00020000")
        a("s_lshl_b32 s92, s2, 3")
        a(f"s_add_u32 s92, s92, s{wid}")
        a("s_lshl_b32 s92, s92, 4")
        a("s_waitcnt lgkmcnt(0)")
        a("s_sub_u32 s86, s86, s82")
        a("v_mov_b32 v252, s80")
        a("v_mov_b32 v253, s84")
        a("v_mov_b32 v254, s86")
        a(f"v_mov_b32 v255, s{wid}")
        a("v_mov_b32 v251, 0")
        a("buffer_store_dwordx4 v[252:255], v251, s[88:91], s92 offen")

S_WID = 3
P_AX, P_CR, P_CI, P_HR, P_HI, P_BX, P_WG, P_WU = 16, 18, 20, 22, 24, 26, 28, 30
P_WD, P_GW, P_OUT, P_DBG, P_WS = 32, 34, 36, 38, 40
R_T, R_M1, R_M2, R_O = 44, 48, 52, 56
S_XCD, S_IDX = 4, 5
S_T0, S_M0 = 60, 61
S_SLOT = 62
S_CNT = 63
S_LW = 64
S_KT = 65
S_TMP = 66
S_OBASE = 72
S_JOB = 73
S_ROT = 74
S_K0 = 75
S_KN = 95

V_LANE = 250
V_TMP = 240

def gemm_role(a, tag, NM, LA, S, nK, njobs, pitchT, pitchM, cfg, touch):
    SB = 16384 * (1 + NM)
    DPT = 4 * (1 + NM)
    ntmask = cfg.get("nt", 0)
    flT = " nt" if ntmask & (1 if NM == 1 else 2) else ""
    flM = " nt" if ntmask & (2 if NM == 1 else 4) else ""
    flS = " nt" if ntmask & 32 else ""
    G = nK * njobs
    nsets = 4 if LA >= 2 else 2
    L_loader = f"{tag}_loader"
    L_end = f"{tag}_end"
    a(f"s_cmp_ge_u32 s{S_WID}, 4")
    a(f"s_cbranch_scc1 {L_loader}")

    ACC = 0
    NACC = NM * 4
    FR = 128
    R = 2 + NM * 4
    SETSZ = 8 + NM * 8
    VT = 224
    VT0 = 192
    VM0 = 196
    a.c(f"{tag}: compute wave setup")
    a(f"s_lshr_b32 s{S_TMP}, s{S_WID}, 1")
    a(f"s_and_b32 s{S_TMP+1}, s{S_WID}, 1")
    a(f"v_and_b32 v{V_TMP}, 31, v{V_LANE}")
    a(f"v_lshrrev_b32 v{V_TMP+1}, 5, v{V_LANE}")
    a(f"v_bfe_u32 v{V_TMP+2}, v{V_LANE}, 1, 3")
    a(f"v_xor_b32 v{V_TMP+1}, v{V_TMP+1}, v{V_TMP+2}")
    a(f"v_lshlrev_b32 v{V_TMP+1}, 4, v{V_TMP+1}")
    a(f"v_lshl_add_u32 v{V_TMP}, v{V_TMP}, 7, v{V_TMP+1}")
    a(f"s_lshl_b32 s{S_TMP+2}, s{S_TMP}, 13")
    a(f"v_add_u32 v{VT0}, s{S_TMP+2}, v{V_TMP}")
    for j in range(1, 4):
        a(f"v_xor_b32 v{VT0+j}, {32*j}, v{VT0}")
    a(f"v_bfe_u32 v{V_TMP}, v{V_LANE}, 2, 2")
    a(f"v_lshrrev_b32 v{V_TMP+1}, 5, v{V_LANE}")
    a(f"v_lshl_add_u32 v{V_TMP+1}, v{V_TMP+1}, 3, v{V_TMP}")
    a(f"v_lshlrev_b32 v{V_TMP+1}, 8, v{V_TMP+1}")
    a(f"v_bfe_u32 v{V_TMP+2}, v{V_LANE}, 4, 1")
    a(f"v_lshl_add_u32 v{V_TMP+1}, v{V_TMP+2}, 5, v{V_TMP+1}")
    a(f"v_and_b32 v{V_TMP+2}, 3, v{V_LANE}")
    a(f"v_lshl_add_u32 v{V_TMP+1}, v{V_TMP+2}, 3, v{V_TMP+1}")
    a(f"v_add_u32 v{V_TMP+1}, 16384, v{V_TMP+1}")
    a(f"s_lshl_b32 s{S_TMP+2}, s{S_TMP+1}, 1")
    for mi in range(2):
        a(f"s_add_u32 s{S_TMP+3}, s{S_TMP+2}, {mi}")
        a(f"v_xor_b32 v{V_TMP+2}, s{S_TMP+3}, v{V_TMP}")
        a(f"v_lshl_add_u32 v{VM0+mi}, v{V_TMP+2}, 6, v{V_TMP+1}")
    VO = 236
    a(f"s_mul_i32 s{S_TMP+2}, s{S_TMP}, {TT_STRIDE}")
    a(f"s_lshl_b32 s{S_TMP+3}, s{S_TMP+1}, 13")
    a(f"s_add_u32 s{S_TMP+2}, s{S_TMP+2}, s{S_TMP+3}")
    a(f"v_lshlrev_b32 v{VO}, 4, v{V_LANE}")
    a(f"v_add_u32 v{VO}, s{S_TMP+2}, v{VO}")
    a(f"s_mov_b32 s{S_SLOT}, 0")
    a(f"s_mov_b32 s{S_JOB}, 0")

    def tfrag(st, ni):
        return FR + st * SETSZ + ni * 4
    def mfrag(st, m, mi):
        return FR + st * SETSZ + 8 + (m * 2 + mi) * 4
    def acc(m, mi, ni):
        return ACC + ((m * 2 + mi) * 2 + ni) * 16
    def reads(j, st, aset):
        out = []
        vt = VT + aset * 6
        vm = vt + 4
        for ni in range(2):
            out.append(f"ds_read_b128 {vr(tfrag(st, ni), 4)}, v{vt+j} offset:{ni*4096}")
        for m in range(NM):
            for mi in range(2):
                for q in range(2):
                    out.append(f"ds_read_b64_tr_b16 {vr(mfrag(st, m, mi)+2*q, 2)}, v{vm+mi} offset:{m*16384 + j*4096 + q*1024}")
        return out
    def mfmas(st):
        out = []
        for m in range(NM):
            for mi in range(2):
                for ni in range(2):
                    d = vr(acc(m, mi, ni), 16)
                    out.append(f"v_mfma_f32_32x32x16_bf16 {d}, {vr(mfrag(st, m, mi), 4)}, {vr(tfrag(st, ni), 4)}, {d}")
        return out
    def set_addr(aset):
        out = []
        vt = VT + aset * 6
        for j in range(4):
            out.append(f"v_add_u32 v{vt+j}, s{S_SLOT}, v{VT0+j}")
        for mi in range(2):
            out.append(f"v_add_u32 v{vt+4+mi}, s{S_SLOT}, v{VM0+mi}")
        return out
    def next_slot():
        a(f"s_add_u32 s{S_SLOT}, s{S_SLOT}, {SB}")
        a(f"s_cmp_eq_u32 s{S_SLOT}, {S*SB}")
        a(f"s_cselect_b32 s{S_SLOT}, 0, s{S_SLOT}")
    def interleave(mf, rd, extra=()):
        n = len(mf)
        if cfg.get("nomfma"):
            mf = ["s_nop 0"] * n
        if cfg.get("noreads"):
            rd = []
        rd = list(rd) + list(extra)
        per = (len(rd) + n - 1) // n if rd else 0
        ri = 0
        for i, m in enumerate(mf):
            a(m)
            k = 0
            while ri < len(rd) and k < per:
                a(rd[ri]); ri += 1; k += 1
        while ri < len(rd):
            a(rd[ri]); ri += 1

    if cfg.get("touch", 1):
        touch(a, "init")
    L_job = f"{tag}_job"
    a.label(L_job)
    for i in range(NACC * 16):
        a(f"v_mov_b32 v{ACC+i}, 0")
    for x in set_addr(0):
        a(x)
    a("s_barrier")
    for s_ in range(LA):
        for r_ in reads(s_, s_ % nsets, 0):
            a(r_)
    assert nK % 2 == 0
    a(f"s_mov_b32 s{S_CNT}, {nK//2}")
    L_loop = f"{tag}_cloop"
    L_last = f"{tag}_clast"
    a.label(L_loop)
    def tile(aset, last):
        for j in range(4):
            extra = []
            if j == 0 and not last:
                next_slot()
                extra = set_addr(aset ^ 1)
            if j == 4 - LA and not last:
                a("s_waitcnt lgkmcnt(0)")
                a("s_barrier")
            else:
                if j + LA < 4 or not last:
                    a(f"s_waitcnt lgkmcnt({(LA-1)*R})")
                else:
                    a(f"s_waitcnt lgkmcnt({min(3-j, LA-1)*R})")
            if j + LA < 4:
                rd = reads(j + LA, (j + LA) % nsets, aset)
            elif not last:
                rd = reads((j + LA) % 4, (j + LA) % nsets, aset ^ 1)
            else:
                rd = []
            interleave(mfmas(j % nsets), rd, extra)
    tile(0, False)
    if cfg.get("touch", 1):
        touch(a, "loop0")
    a(f"s_sub_u32 s{S_CNT}, s{S_CNT}, 1")
    a(f"s_cmp_eq_u32 s{S_CNT}, 0")
    a(f"s_cbranch_scc1 {L_last}")
    tile(1, False)
    if cfg.get("touch", 1):
        touch(a, "loop1")
    a(f"s_branch {L_loop}")
    a.label(L_last)
    tile(1, True)
    next_slot()
    a("s_nop 15")
    a("s_nop 3")
    TP = FR
    def store_tile(src, mi, ni):
        for b in range(2):
            t = TP + 32 + ((mi * 2 + ni) * 2 + b) * 4
            for h in range(2):
                g_ = 2 * b + h
                a(f"v_cvt_pk_bf16_f32 v{t+2*h}, v{src+4*g_}, v{src+4*g_+1}")
                a(f"v_cvt_pk_bf16_f32 v{t+2*h+1}, v{src+4*g_+2}, v{src+4*g_+3}")
            a("s_nop 1")
            a(f"v_permlane32_swap_b32 v{t}, v{t+2}")
            a(f"v_permlane32_swap_b32 v{t+1}, v{t+3}")
            off = (mi * 2 + b) * 2048 + ni * 1024
            a(f"buffer_store_dwordx4 {vr(t,4)}, v{VO}, s[{R_O}:{R_O+3}], s{S_OBASE} offen offset:{off & 4095}{flS}" if off < 4096 else
              f"buffer_store_dwordx4 {vr(t,4)}, v{VO+1}, s[{R_O}:{R_O+3}], s{S_OBASE} offen offset:{off - 4096}{flS}")
    a(f"v_add_u32 v{VO+1}, 4096, v{VO}")
    if NM == 1:
        for mi in range(2):
            for ni in range(2):
                store_tile(acc(0, mi, ni), mi, ni)
    else:
        a(f"s_mov_b32 s{S_TMP+4}, 0xbfb8aa3b")
        for mi in range(2):
            for ni in range(2):
                g_ = acc(0, mi, ni); u_ = acc(1, mi, ni)
                for i in range(16):
                    a(f"v_mul_f32 v{g_+i}, s{S_TMP+4}, v{g_+i}")
                for i in range(16):
                    a(f"v_exp_f32 v{g_+i}, v{g_+i}")
                for i in range(16):
                    a(f"v_add_f32 v{g_+i}, 1.0, v{g_+i}")
                for i in range(16):
                    a(f"v_rcp_f32 v{g_+i}, v{g_+i}")
                for i in range(16):
                    a(f"v_mul_f32 v{g_+i}, v{g_+i}, v{u_+i}")
                store_tile(g_, mi, ni)
    if njobs > 1:
        a(f"s_add_u32 s{S_OBASE}, s{S_OBASE}, {2*TT_STRIDE}")
        a(f"s_add_u32 s{S_JOB}, s{S_JOB}, 1")
        a(f"s_cmp_lt_u32 s{S_JOB}, {njobs}")
        a(f"s_cbranch_scc1 {L_job}")
    a(f"s_branch {L_end}")

    a.label(L_loader)
    VLT = 0
    VLM = 4
    a(f"s_sub_u32 s{S_TMP}, s{S_WID}, 4")
    a(f"s_lshl_b32 s{S_LW}, s{S_TMP}, 12")
    a(f"v_lshrrev_b32 v{V_TMP}, 3, v{V_LANE}")
    a(f"s_lshl_b32 s{S_TMP+1}, s{S_TMP}, 5")
    a(f"v_add_u32 v{V_TMP}, s{S_TMP+1}, v{V_TMP}")
    a(f"v_and_b32 v{V_TMP+1}, 7, v{V_LANE}")
    a(f"v_lshrrev_b32 v{V_TMP+2}, 4, v{V_LANE}")
    a(f"v_xor_b32 v{V_TMP+1}, v{V_TMP+1}, v{V_TMP+2}")
    for i in range(4):
        a(f"v_add_u32 v{V_TMP+3}, {8*i}, v{V_TMP}")
        a(f"v_mul_u32_u24 v{V_TMP+3}, {pitchT}, v{V_TMP+3}")
        a(f"v_xor_b32 v{V_TMP+4}, {(i&1)*4}, v{V_TMP+1}")
        a(f"v_lshl_add_u32 v{VLT+i}, v{V_TMP+4}, 4, v{V_TMP+3}")
    a(f"v_lshrrev_b32 v{V_TMP}, 4, v{V_LANE}")
    a(f"v_lshlrev_b32 v{V_TMP+2}, 2, v{V_TMP}")
    a(f"v_and_b32 v{V_TMP+1}, 15, v{V_LANE}")
    a(f"v_xor_b32 v{V_TMP+1}, v{V_TMP+1}, v{V_TMP+2}")
    a(f"s_lshl_b32 s{S_TMP+1}, s{S_TMP}, 4")
    a(f"v_add_u32 v{V_TMP}, s{S_TMP+1}, v{V_TMP}")
    for i in range(4):
        a(f"v_add_u32 v{V_TMP+3}, {4*i}, v{V_TMP}")
        a(f"v_mul_u32_u24 v{V_TMP+3}, {pitchM}, v{V_TMP+3}")
        a(f"v_lshl_add_u32 v{VLM+i}, v{V_TMP+1}, 4, v{V_TMP+3}")
    a(f"s_mov_b32 s{S_SLOT}, 0")
    rot = cfg.get("rot", 0) and not (cfg.get("lat", 0) and NM == 1)
    if rot:
        a(f"s_mov_b32 s{S_KT}, s{S_K0}")
        a(f"s_lshl_b32 s{S_TMP+2}, s{S_KT}, 7")
        a(f"s_add_u32 s{S_T0}, s{S_T0}, s{S_TMP+2}")
        a(f"s_mul_i32 s{S_TMP+2}, s{S_KT}, {64*pitchM}")
        a(f"s_add_u32 s{S_M0}, s{S_M0}, s{S_TMP+2}")
        a(f"s_mov_b32 s{S_KN}, 0")
    else:
        a(f"s_mov_b32 s{S_KT}, 0")
    lat = cfg.get("lat", 0) and NM == 1
    LG = cfg.get("latg", 4)
    if lat:
        a(f"s_mov_b32 s{S_KT}, 0")
        a(f"s_lshr_b32 s{S_K0}, s{S_K0}, 3")
        if LG == 8:
            a(f"s_lshl_b32 s{S_K0}, s{S_K0}, 1")
        if LG == 16:
            a(f"s_lshl_b32 s{S_K0}, s{S_K0}, 2")
        if LG == 2:
            a(f"s_and_b32 s{S_K0}, s{S_K0}, 1")
    def issue():
        if lat:
            a(f"s_add_u32 s{S_TMP+3}, s{S_KT}, s{S_K0}")
            a(f"s_and_b32 s{S_TMP+3}, s{S_TMP+3}, {LG-1}")
            a(f"s_andn2_b32 s{S_TMP+4}, s{S_KT}, {LG-1}")
            a(f"s_or_b32 s{S_TMP+3}, s{S_TMP+3}, s{S_TMP+4}")
            a(f"s_lshl_b32 s{S_TMP+4}, s{S_TMP+3}, 7")
            a(f"s_add_u32 s76, s{S_T0}, s{S_TMP+4}")
            a(f"s_lshl_b32 s{S_TMP+4}, s{S_TMP+3}, 16")
            a(f"s_add_u32 s77, s{S_M0}, s{S_TMP+4}")
            a(f"s_add_u32 s{S_KT}, s{S_KT}, 1")
            a(f"s_add_u32 s{S_TMP+2}, s{S_SLOT}, s{S_LW}")
            for i in range(4):
                a(f"s_add_u32 m0, s{S_TMP+2}, {i*1024}")
                a("s_nop 0")
                a(f"buffer_load_dwordx4 v{VLT+i}, s[{R_T}:{R_T+3}], s76 offen{flT} lds")
            for i in range(4):
                a(f"s_add_u32 m0, s{S_TMP+2}, {16384 + i*1024}")
                a("s_nop 0")
                a(f"buffer_load_dwordx4 v{VLM+i}, s[{R_M1}:{R_M1+3}], s77 offen{flM} lds")
            next_slot()
            return
        a(f"s_add_u32 s{S_TMP+2}, s{S_SLOT}, s{S_LW}")
        for i in range(4):
            if cfg.get("noload") or (cfg.get("noT") and NM == 1): break
            a(f"s_add_u32 m0, s{S_TMP+2}, {i*1024}")
            a("s_nop 0")
            a(f"buffer_load_dwordx4 v{VLT+i}, s[{R_T}:{R_T+3}], s{S_T0} offen{flT} lds")
        for m in range(NM):
            if cfg.get("noload") or (cfg.get("noM") and NM == 1): break
            rm = R_M1 if m == 0 else R_M2
            for i in range(4):
                a(f"s_add_u32 m0, s{S_TMP+2}, {16384*(1+m) + i*1024}")
                a("s_nop 0")
                a(f"buffer_load_dwordx4 v{VLM+i}, s[{rm}:{rm+3}], s{S_M0} offen{flM} lds")
        next_slot()
        a(f"s_add_u32 s{S_T0}, s{S_T0}, 128")
        a(f"s_add_u32 s{S_M0}, s{S_M0}, {64*pitchM}")
        if rot:
            lab = a.newlabel(f"{tag}_nj")
            a(f"s_add_u32 s{S_KT}, s{S_KT}, 1")
            a(f"s_cmp_lg_u32 s{S_KT}, {nK}")
            a(f"s_cbranch_scc1 {lab}")
            a(f"s_mov_b32 s{S_KT}, 0")
            a(f"s_sub_u32 s{S_T0}, s{S_T0}, {nK*128}")
            a(f"s_sub_u32 s{S_M0}, s{S_M0}, {nK*64*pitchM}")
            a.label(lab)
            if njobs > 1:
                lab = a.newlabel(f"{tag}_nk")
                a(f"s_add_u32 s{S_KN}, s{S_KN}, 1")
                a(f"s_cmp_lg_u32 s{S_KN}, {nK}")
                a(f"s_cbranch_scc1 {lab}")
                a(f"s_add_u32 s{S_T0}, s{S_T0}, {128*pitchT}")
                a.label(lab)
        elif njobs > 1:
            lab = a.newlabel(f"{tag}_nj")
            a(f"s_add_u32 s{S_KT}, s{S_KT}, 1")
            a(f"s_cmp_lg_u32 s{S_KT}, {nK}")
            a(f"s_cbranch_scc1 {lab}")
            a(f"s_mov_b32 s{S_KT}, 0")
            a(f"s_add_u32 s{S_T0}, s{S_T0}, {128*pitchT - nK*128}")
            a(f"s_sub_u32 s{S_M0}, s{S_M0}, {nK*64*pitchM}")
            a.label(lab)
    def stamp():
        if cfg.get("stamp"):
            a("s_memtime s[76:77]")
            a("s_waitcnt lgkmcnt(0)")
            a("s_sub_u32 s76, s76, s82")
            a("s_mov_b32 m0, s94")
            a("s_nop 3")
            a("v_writelane_b32 v100, s76, m0")
            a("s_add_u32 s94, s94, 1")
    a("s_mov_b32 s94, 0")
    if cfg.get("pair", 1) and NM == 1 and njobs == 1 and not rot:
        def issT(slot_expr_sgpr, soff):
            for i in range(4):
                a(f"s_add_u32 m0, s{slot_expr_sgpr}, {i*1024}")
                a("s_nop 0")
                a(f"buffer_load_dwordx4 v{VLT+i}, s[{R_T}:{R_T+3}], s{soff} offen{flT} lds")
        def issM(slot_expr_sgpr, soff):
            for i in range(4):
                a(f"s_add_u32 m0, s{slot_expr_sgpr}, {16384 + i*1024}")
                a("s_nop 0")
                a(f"buffer_load_dwordx4 v{VLM+i}, s[{R_M1}:{R_M1+3}], s{soff} offen{flM} lds")
        SA, SBs, ST1, SM1 = S_TMP+2, S_TMP+3, S_TMP+4, S_TMP+5
        stamp()
        for t in range(3):
            a(f"s_add_u32 s{SA}, s{S_LW}, {t*SB}")
            a(f"s_add_u32 s{ST1}, s{S_T0}, {t*128}")
            issT(SA, ST1)
        for t in range(3):
            a(f"s_add_u32 s{SA}, s{S_LW}, {t*SB}")
            a(f"s_add_u32 s{SM1}, s{S_M0}, {t*64*pitchM}")
            issM(SA, SM1)
        stamp()
        a(f"s_add_u32 s{S_T0}, s{S_T0}, {3*128}")
        a(f"s_add_u32 s{S_M0}, s{S_M0}, {3*64*pitchM}")
        a(f"s_mov_b32 s{S_SLOT}, {3*SB}")
        a("s_waitcnt vmcnt(8)")
        a("s_barrier")
        stamp()
        a("s_waitcnt vmcnt(4)")
        a("s_barrier")
        stamp()
        def group(two):
            a(f"s_add_u32 s{SA}, s{S_SLOT}, s{S_LW}")
            next_slot()
            a(f"s_add_u32 s{SBs}, s{S_SLOT}, s{S_LW}")
            a(f"s_add_u32 s{ST1}, s{S_T0}, 128")
            a(f"s_add_u32 s{SM1}, s{S_M0}, {64*pitchM}")
            issT(SA, S_T0)
            if two: issT(SBs, ST1)
            issM(SA, S_M0)
            if two: issM(SBs, SM1)
            next_slot()
            a(f"s_add_u32 s{S_T0}, s{S_T0}, 256")
            a(f"s_add_u32 s{S_M0}, s{S_M0}, {128*pitchM}")
        group(True)
        a("s_waitcnt vmcnt(16)")
        a("s_barrier")
        stamp()
        a(f"s_mov_b32 s{S_CNT}, 13")
        L_ll = f"{tag}_lloop"
        a.label(L_ll)
        a("s_waitcnt vmcnt(4)")
        a("s_barrier")
        stamp()
        group(True)
        a("s_waitcnt vmcnt(16)")
        a("s_barrier")
        stamp()
        a(f"s_sub_u32 s{S_CNT}, s{S_CNT}, 1")
        a(f"s_cmp_lg_u32 s{S_CNT}, 0")
        a(f"s_cbranch_scc1 {L_ll}")
        a("s_waitcnt vmcnt(4)")
        a("s_barrier")
        stamp()
        group(False)
        a("s_waitcnt vmcnt(8)")
        a("s_barrier")
        stamp()
        a("s_waitcnt vmcnt(0)")
        a("s_barrier")
        stamp()
    else:
        stamp()
        for g in range(S - 1):
            issue()
        stamp()
        a(f"s_mov_b32 s{S_CNT}, {G-(S-1)}")
        L_ll = f"{tag}_lloop"
        a.label(L_ll)
        a(f"s_waitcnt vmcnt({(S-2)*DPT})")
        a("s_barrier")
        stamp()
        issue()
        a(f"s_sub_u32 s{S_CNT}, s{S_CNT}, 1")
        a(f"s_cmp_lg_u32 s{S_CNT}, 0")
        a(f"s_cbranch_scc1 {L_ll}")
        for g in range(G - (S - 1), G):
            a(f"s_waitcnt vmcnt({(G-1-g)*DPT})")
            a("s_barrier")
            stamp()
    if cfg.get("stamp"):
        a(f"s_add_u32 s88, s{P_WS}, {PROF + 0x40000:#x}")
        a(f"s_addc_u32 s89, s{P_WS+1}, 0")
        a("s_mov_b32 s90, 0x100000")
        a("s_mov_b32 s91, 0x00020000")
        a("s_lshl_b32 s92, s2, 2")
        a(f"s_add_u32 s92, s92, s{S_TMP}")
        a("s_lshl_b32 s92, s92, 8")
        a(f"v_lshlrev_b32 v101, 2, v{V_LANE}")
        a("buffer_store_dword v100, v101, s[88:91], s92 offen")
    a.label(L_end)
    prof_end(a, cfg, P_WS, S_WID, 0)
    a("s_endpgm")

def aux_role(a, cfg):
    a.c("AUX: gate, H relayout, Wd transpose (all loads issued up front)")
    AW = S_TMP
    a(f"s_sub_u32 s{S_TMP+1}, s{S_IDX}, 30")
    a(f"s_lshl_b32 s{S_TMP+1}, s{S_TMP+1}, 3")
    a(f"s_add_u32 s{S_TMP+1}, s{S_TMP+1}, s{S_XCD}")
    a(f"s_lshl_b32 s{AW}, s{S_TMP+1}, 3")
    a(f"s_add_u32 s{AW}, s{AW}, s{S_WID}")
    RX, RG, RW, RH, RD = R_T, R_M1, R_M2, R_O, 96
    srd(a, RX, P_AX, 2048*512*2)
    srd(a, RG, P_GW, 1024)
    srd(a, RW, P_WS, GATE + GATE_SIZE)
    srd(a, RD, P_WD, 1792*512*2)
    a(f"s_bitcmp1_b32 s{AW}, 3")
    a(f"s_cselect_b32 s{S_TMP+2}, s{P_HI}, s{P_HR}")
    a(f"s_cselect_b32 s{S_TMP+3}, s{P_HI+1}, s{P_HR+1}")
    a(f"s_cselect_b32 s{S_M0}, 0x80008000, 0")
    srd(a, RH, S_TMP+2, 512*512*2)
    a(f"v_lshlrev_b32 v1, 2, v{V_LANE}")
    a(f"s_mul_i32 s{S_TMP+1}, s{AW}, 7")
    for i in range(7):
        a(f"s_add_u32 s{S_TMP+4}, s{S_TMP+1}, {i}")
        a(f"s_lshr_b32 s{S_TMP+2}, s{S_TMP+4}, 2")
        a(f"s_and_b32 s{S_TMP+3}, s{S_TMP+4}, 3")
        a(f"s_lshl_b32 s{S_T0}, s{S_TMP+2}, 13")
        a(f"s_lshl_b32 s{S_CNT}, s{S_TMP+3}, 8")
        a(f"s_add_u32 s{S_T0}, s{S_T0}, s{S_CNT}")
        a(f"s_add_u32 s{S_CNT}, s{S_T0}, 4096")
        for ff in range(8):
            o = ff * 1024
            a(f"buffer_load_dword v{64+8*i+ff}, v1, s[{RD}:{RD+3}], s{S_T0 if o < 4096 else S_CNT} offen offset:{o & 4095}")
    a(f"s_lshr_b32 s{S_TMP+1}, s{AW}, 4")
    a(f"s_and_b32 s{S_TMP+4}, s{AW}, 15")
    a(f"v_and_b32 v5, 31, v{V_LANE}")
    a(f"s_lshl_b32 s{S_TMP+6}, s{S_TMP+1}, 6")
    a(f"v_add_u32 v5, s{S_TMP+6}, v5")
    a(f"v_lshlrev_b32 v5, 10, v5")
    a(f"v_lshrrev_b32 v6, 5, v{V_LANE}")
    a(f"v_lshl_add_u32 v5, v6, 4, v5")
    a(f"v_add_u32 v6, 32768, v5")
    a(f"s_and_b32 s{S_TMP+6}, s{S_TMP+4}, 7")
    a(f"s_lshl_b32 s{S_TMP+6}, s{S_TMP+6}, 7")
    for i in range(8):
        a(f"buffer_load_dwordx4 {vr(128+4*i,4)}, v{6 if i & 1 else 5}, s[{RH}:{RH+3}], s{S_TMP+6} offen offset:{(i >> 1) * 32}")
    a(f"s_mul_i32 s{S_SLOT}, s{S_TMP+1}, {TT_STRIDE}")
    a(f"s_lshl_b32 s{S_TMP+4}, s{S_TMP+4}, 13")
    a(f"s_add_u32 s{S_SLOT}, s{S_SLOT}, s{S_TMP+4}")
    a(f"s_add_u32 s{S_SLOT}, s{S_SLOT}, {B2F:#x}")
    a(f"v_lshlrev_b32 v8, 4, v{V_LANE}")
    a(f"s_lshl_b32 s{S_CNT}, s{AW}, 14")
    a(f"s_add_u32 s{S_LW}, s{S_CNT}, 4096")
    a(f"s_add_u32 s{S_KT}, s{S_CNT}, 8192")
    a(f"s_add_u32 s{S_JOB}, s{S_CNT}, 12288")
    for i in range(16):
        so = [S_CNT, S_LW, S_KT, S_JOB][i >> 2]
        a(f"buffer_load_dwordx4 {vr(160+4*i,4)}, v8, s[{RX}:{RX+3}], s{so} offen offset:{(i & 3)*1024}")
    a(f"buffer_load_dwordx4 v[16:19], v8, s[{RG}:{RG+3}], 0 offen")
    a(f"s_mov_b32 s{S_TMP+5}, 0x05040100")
    a(f"s_mov_b32 s{S_TMP+6}, 0x07060302")
    a(f"v_lshrrev_b32 v2, 5, v{V_LANE}")
    a(f"v_mul_u32_u24 v2, {TT_STRIDE}, v2")
    a(f"v_bfe_u32 v3, v{V_LANE}, 4, 1")
    a(f"v_lshl_add_u32 v2, v3, 10, v2")
    a(f"v_and_b32 v3, 15, v{V_LANE}")
    a(f"v_lshl_add_u32 v2, v3, 5, v2")
    a(f"s_mul_i32 s{S_TMP+1}, s{AW}, 7")
    a("s_waitcnt vmcnt(25)")
    for i in range(7):
        a(f"s_add_u32 s{S_TMP+4}, s{S_TMP+1}, {i}")
        a(f"s_lshr_b32 s{S_TMP+2}, s{S_TMP+4}, 2")
        a(f"s_and_b32 s{S_TMP+3}, s{S_TMP+4}, 3")
        a(f"s_mul_i32 s{S_T0}, s{S_TMP+3}, {2*TT_STRIDE}")
        a(f"s_lshr_b32 s{S_CNT}, s{S_TMP+2}, 1")
        a(f"s_lshl_b32 s{S_CNT}, s{S_CNT}, 11")
        a(f"s_add_u32 s{S_T0}, s{S_T0}, s{S_CNT}")
        a(f"s_and_b32 s{S_CNT}, s{S_TMP+2}, 1")
        a(f"s_lshl_b32 s{S_CNT}, s{S_CNT}, 9")
        a(f"s_add_u32 s{S_T0}, s{S_T0}, s{S_CNT}")
        a(f"s_add_u32 s{S_T0}, s{S_T0}, {B2F + 64*2048:#x}")
        b = 64 + 8 * i
        for p in range(4):
            a(f"v_perm_b32 v{10+p}, v{b+2*p+1}, v{b+2*p}, s{S_TMP+6}")
        for p in range(4):
            a(f"v_perm_b32 v{b+p}, v{b+2*p+1}, v{b+2*p}, s{S_TMP+5}")
        for p in range(4):
            a(f"v_mov_b32 v{b+4+p}, v{10+p}")
        a(f"buffer_store_dwordx4 {vr(b,4)}, v2, s[{RW}:{RW+3}], s{S_T0} offen")
        a(f"buffer_store_dwordx4 {vr(b+4,4)}, v2, s[{RW}:{RW+3}], s{S_T0} offen offset:16")
    a("s_waitcnt vmcnt(31)")
    a(f"v_lshlrev_b32 v3, 4, v{V_LANE}")
    a(f"v_add_u32 v4, 4096, v3")
    for i in range(32):
        a(f"v_xor_b32 v{128+i}, s{S_M0}, v{128+i}")
    for i in range(8):
        off = i * 1024
        a(f"buffer_store_dwordx4 {vr(128+4*i,4)}, v{3 if off < 4096 else 4}, s[{RW}:{RW+3}], s{S_SLOT} offen offset:{off & 4095}")
    a("s_waitcnt vmcnt(22)")
    for i in range(16):
        a(f"v_mov_b32 v{20+i}, 0")
    for d in range(4):
        for i in range(16):
            a(f"v_dot2_f32_bf16 v{20+i}, v{160+4*i+d}, v{16+d}, v{20+i}")
    a(f"s_mul_i32 s{S_CNT}, s{S_WID}, 4352")
    a(f"v_lshlrev_b32 v10, 2, v{V_LANE}")
    a(f"v_add_u32 v10, s{S_CNT}, v10")
    a("s_nop 1")
    for i in range(16):
        a(f"ds_write_b32 v10, v{20+i} offset:{i*272}")
    a(f"v_lshrrev_b32 v7, 2, v{V_LANE}")
    a(f"v_mul_u32_u24 v11, 272, v7")
    a(f"v_and_b32 v12, 3, v{V_LANE}")
    a(f"v_lshl_add_u32 v11, v12, 6, v11")
    a(f"v_add_u32 v11, s{S_CNT}, v11")
    a("s_waitcnt lgkmcnt(0)")
    for i in range(4):
        a(f"ds_read_b128 {vr(36+4*i,4)}, v11 offset:{i*16}")
    a("s_waitcnt lgkmcnt(0)")
    for i in range(8):
        a(f"v_add_f32 v{36+i}, v{36+i}, v{44+i}")
    for i in range(4):
        a(f"v_add_f32 v{36+i}, v{36+i}, v{40+i}")
    a("v_add_f32 v36, v36, v38")
    a("v_add_f32 v37, v37, v39")
    a("v_add_f32 v10, v36, v37")
    a("s_nop 1")
    a("v_add_f32 v10, v10, v10 quad_perm:[1,0,3,2] row_mask:0xf bank_mask:0xf")
    a("s_nop 1")
    a("v_add_f32 v10, v10, v10 quad_perm:[2,3,0,1] row_mask:0xf bank_mask:0xf")
    a("v_mul_f32 v10, 0xbfb8aa3b, v10")
    a("v_exp_f32 v10, v10")
    a("s_nop 0")
    a("v_add_f32 v10, 1.0, v10")
    a("v_rcp_f32 v10, v10")
    a(f"s_lshl_b32 s{S_CNT}, s{AW}, 4")
    a(f"v_add_u32 v7, s{S_CNT}, v7")
    a(f"v_lshlrev_b32 v11, 2, v7")
    a(f"v_add_u32 v11, {GATE:#x}, v11")
    a(f"buffer_store_dword v10, v11, s[{RW}:{RW+3}], 0 offen")
    prof_end(a, cfg, P_WS, S_WID, 0)
    a("s_endpgm")

def stage1(a, cfg):
    a(f".globl {K1}")
    a(".p2align 8")
    a(f".type {K1},@function")
    a.label(K1)
    a("s_cmp_ge_u32 s2, 256")
    a("s_cbranch_scc1 S1_exit")
    prof_start(a, cfg)
    a("s_load_dwordx16 s[16:31], s[0:1], 0")
    a("s_load_dwordx8 s[32:39], s[0:1], 64")
    a("s_load_dwordx2 s[40:41], s[0:1], 96")
    a("v_lshrrev_b32 v1, 6, v0")
    a(f"v_and_b32 v{V_LANE}, 63, v0")
    a(f"v_readfirstlane_b32 s{S_WID}, v1")
    a(f"s_and_b32 s{S_XCD}, s2, 7")
    a(f"s_lshr_b32 s{S_IDX}, s2, 3")
    a("s_waitcnt lgkmcnt(0)")
    if cfg.get("onlyA"):
        a(f"s_cmp_ge_u32 s{S_IDX}, 16")
        a("s_cbranch_scc1 S1_exit")
    a(f"s_cmp_ge_u32 s{S_IDX}, 30")
    a("s_cbranch_scc1 S1_aux")
    srd(a, R_O, P_WS, A2F_SIZE)
    a(f"s_cmp_ge_u32 s{S_IDX}, 16")
    a("s_cbranch_scc1 S1_typeB")
    a(f"s_lshl_b32 s{S_TMP}, s{S_XCD}, 2")
    a(f"s_lshr_b32 s{S_TMP+1}, s{S_IDX}, 2")
    a(f"s_add_u32 s{S_TMP}, s{S_TMP}, s{S_TMP+1}")
    a(f"s_and_b32 s{S_TMP+1}, s{S_IDX}, 3")
    a(f"s_mov_b32 s{S_ROT}, s{S_TMP}")
    a(f"s_lshr_b32 s{S_K0}, s{S_IDX}, 2")
    a(f"s_add_u32 s{S_K0}, s{S_K0}, s{S_TMP+1}")
    a(f"s_and_b32 s{S_K0}, s{S_K0}, 3")
    a(f"s_lshl_b32 s{S_K0}, s{S_K0}, 3")
    a(f"s_cmp_ge_u32 s{S_TMP}, 16")
    a(f"s_cselect_b32 s{S_TMP+2}, s{P_CI}, s{P_CR}")
    a(f"s_cselect_b32 s{S_TMP+3}, s{P_CI+1}, s{P_CR+1}")
    a(f"s_cselect_b32 s{S_TMP+4}, 32, 0")
    srd(a, R_T, S_TMP+2, 2048*2048*2)
    srd(a, R_M1, P_AX, 2048*512*2)
    a(f"s_and_b32 s{S_TMP}, s{S_TMP}, 15")
    a(f"s_lshl_b32 s{S_T0}, s{S_TMP}, 19")
    a(f"s_lshl_b32 s{S_M0}, s{S_TMP+1}, 8")
    a(f"s_mul_i32 s{S_OBASE}, s{S_TMP}, {2*TT_STRIDE}")
    a(f"s_lshl_b32 s{S_TMP+1}, s{S_TMP+1}, 3")
    a(f"s_add_u32 s{S_TMP+1}, s{S_TMP+1}, s{S_TMP+4}")
    a(f"s_lshl_b32 s{S_TMP+1}, s{S_TMP+1}, 11")
    a(f"s_add_u32 s{S_OBASE}, s{S_OBASE}, s{S_TMP+1}")
    SEC = cfg.get("sec", 128)
    VJ = 239
    PDC = cfg.get("pdc", 2)
    R_P = 60 + 20
    R_P = 96
    S_PO, S_PC, S_PS = 76, 77, 78
    VP = 238
    def touch_step(a):
        lab = a.newlabel("Tt")
        a(f"s_cmp_eq_u32 s{S_PC}, 0")
        a(f"s_cbranch_scc1 {lab}")
        a(f"buffer_load_dword v{VJ}, v{VP}, s[{R_P}:{R_P+3}], s{S_PO} offen{' nt' if cfg.get('nt',0) & 8 else ''}")
        a(f"s_add_u32 s{S_PO}, s{S_PO}, s{S_PS}")
        a(f"s_sub_u32 s{S_PC}, s{S_PC}, 1")
        a.label(lab)
    CH = cfg.get("ch", 8)
    TPH = cfg.get("tph", 0)
    def touchX(a, where):
        if where != "init":
            return
        a(f"v_lshrrev_b32 v{V_TMP}, 3, v{V_LANE}")
        a(f"s_lshl_b32 s{S_TMP+2}, s{S_IDX}, 3")
        a(f"v_add_u32 v{V_TMP+3}, s{S_TMP+2}, v{V_TMP}")
        a(f"v_lshlrev_b32 v{V_TMP+3}, 10, v{V_TMP+3}")
        a(f"v_and_b32 v{V_TMP+2}, 7, v{V_LANE}")
        a(f"v_lshl_add_u32 v{V_TMP+3}, v{V_TMP+2}, 7, v{V_TMP+3}")
        a(f"s_lshl_b32 s{S_TMP+2}, s{S_WID}, 17")
        for c in range(4):
            a(f"buffer_load_dword v{VJ}, v{V_TMP+3}, s[{R_M1}:{R_M1+3}], s{S_TMP+2} offen")
            if c < 3:
                a(f"s_add_u32 s{S_TMP+2}, s{S_TMP+2}, {4*128*1024}")
    PDP = cfg.get("pdp", 2)
    def touchXC(a, where):
        if where == "init":
            touchX(a, where)
            a(f"v_bfe_u32 v{V_TMP}, v{V_LANE}, 1, 3")
            a(f"s_lshr_b32 s{S_TMP+2}, s{S_M0}, 3")
            a(f"s_lshl_b32 s{S_TMP+3}, s{S_WID}, 3")
            a(f"s_add_u32 s{S_TMP+2}, s{S_TMP+2}, s{S_TMP+3}")
            a(f"v_add_u32 v{V_TMP+1}, s{S_TMP+2}, v{V_TMP}")
            a(f"v_lshlrev_b32 v{V_TMP+1}, 12, v{V_TMP+1}")
            a(f"v_and_b32 v{V_TMP+2}, 1, v{V_LANE}")
            a(f"v_lshl_add_u32 v{VP}, v{V_TMP+2}, 7, v{V_TMP+1}")
            a(f"s_add_u32 s{S_PO}, s{S_T0}, {3*128}")
            a(f"s_mov_b32 s{S_PC}, 15")
            for c in range(PDP):
                tstep(a)
        elif where == "loop0":
            tstep(a)
    def tstep(a):
        lab = a.newlabel("Tc")
        a(f"s_cmp_eq_u32 s{S_PC}, 0")
        a(f"s_cbranch_scc1 {lab}")
        a(f"buffer_load_dword v{VJ}, v{VP}, s[{R_T}:{R_T+3}], s{S_PO} offen nt")
        a(f"s_add_u32 s{S_PO}, s{S_PO}, 256")
        a(f"s_sub_u32 s{S_PC}, s{S_PC}, 1")
        a.label(lab)
    def touchA(a, where):
        NI = CH // 4
        def step(a):
            lab = a.newlabel("Tt")
            a(f"s_cmp_eq_u32 s{S_PC}, 0")
            a(f"s_cbranch_scc1 {lab}")
            for i in range(NI):
                a(f"buffer_load_dword v{VJ}, v{VP}, s[{R_P}:{R_P+3}], s{S_PO} offen{' nt' if cfg.get('nt',0) & 8 else ''}")
                a(f"s_add_u32 s{S_PO}, s{S_PO}, s{S_PS}")
            a(f"s_add_u32 s{S_PO}, s{S_PO}, s{S_PS+1}")
            a(f"s_sub_u32 s{S_PC}, s{S_PC}, 1")
            a.label(lab)
        if where == "init":
            lab = a.newlabel("TAi")
            a(f"s_cmp_ge_u32 s{S_WID}, 2")
            a(f"s_cbranch_scc1 {lab}")
            for i in range(4):
                a(f"s_mov_b32 s{R_P+i}, s{R_T+i}")
            a(f"v_lshrrev_b32 v{V_TMP}, 2, v{V_LANE}")
            a(f"s_lshr_b32 s{S_TMP+2}, s{S_M0}, 3")
            a(f"s_lshl_b32 s{S_TMP+3}, s{S_WID}, 4")
            a(f"s_add_u32 s{S_TMP+2}, s{S_TMP+2}, s{S_TMP+3}")
            a(f"v_add_u32 v{V_TMP+1}, s{S_TMP+2}, v{V_TMP}")
            a(f"v_lshlrev_b32 v{V_TMP+1}, 12, v{V_TMP+1}")
            a(f"v_and_b32 v{V_TMP+2}, 3, v{V_LANE}")
            a(f"v_lshl_add_u32 v{VP}, v{V_TMP+2}, 7, v{V_TMP+1}")
            a(f"s_mov_b32 s{S_PO}, s{S_T0}")
            a(f"s_mov_b32 s{S_PS}, 512")
            a(f"s_mov_b32 s{S_PS+1}, 0")
            a(f"s_branch {lab}e")
            a.label(lab)
            for i in range(4):
                a(f"s_mov_b32 s{R_P+i}, s{R_M1+i}")
            a(f"s_lshl_b32 s{S_TMP+2}, s{S_IDX}, 7")
            a(f"s_sub_u32 s{S_TMP+3}, s{S_WID}, 2")
            a(f"s_lshl_b32 s{S_TMP+3}, s{S_TMP+3}, 6")
            a(f"s_add_u32 s{S_TMP+2}, s{S_TMP+2}, s{S_TMP+3}")
            a(f"v_add_u32 v{V_TMP}, s{S_TMP+2}, v{V_LANE}")
            a(f"v_lshlrev_b32 v{VP}, 7, v{V_TMP}")
            a(f"s_mov_b32 s{S_PO}, 0")
            a(f"s_mov_b32 s{S_PS}, {256*1024}")
            a(f"s_mov_b32 s{S_PS+1}, 0")
            a.label(lab + "e")
            a(f"s_mov_b32 s{S_PC}, {32//CH}")
            for c in range(PDC):
                step(a)
        elif where == "loop0":
            lab = a.newlabel("TAt")
            a(f"s_sub_u32 s{S_TMP+2}, 16, s{S_CNT}")
            a(f"s_and_b32 s{S_TMP+2}, s{S_TMP+2}, {CH//2-1}")
            a(f"s_cmp_lg_u32 s{S_TMP+2}, {TPH}")
            a(f"s_cbranch_scc1 {lab}")
            step(a)
            a.label(lab)
    gemm_role(a, "TA", NM=1, LA=cfg.get("LA_A", 2), S=4, nK=32, njobs=1, pitchT=4096, pitchM=1024, cfg=cfg, touch=(touchXC if cfg.get('xhot') == 2 else touchX if cfg.get('xhot') else touchA))
    a.label("S1_typeB")
    srd(a, R_T, P_AX, 2048*512*2)
    srd(a, R_M1, P_WG, 512*1792*2)
    srd(a, R_M2, P_WU, 512*1792*2)
    a(f"s_sub_u32 s{S_TMP+1}, s{S_IDX}, 16")
    a(f"s_lshl_b32 s{S_TMP+1}, s{S_TMP+1}, 1")
    a(f"s_mul_i32 s{S_TMP+2}, s{S_XCD}, 28")
    a(f"s_add_u32 s{S_TMP+2}, s{S_TMP+2}, s{S_TMP+1}")
    a(f"s_lshr_b32 s{S_TMP+1}, s{S_TMP+2}, 4")
    a(f"s_and_b32 s{S_TMP+2}, s{S_TMP+2}, 15")
    a(f"s_mov_b32 s{S_ROT}, s{S_TMP+2}")
    a(f"s_lshr_b32 s{S_K0}, s{S_TMP+2}, 1")
    if cfg.get("cbmul", 0):
        a(f"s_mul_i32 s{S_TMP+3}, s{S_TMP+1}, {cfg['cbmul']}")
        a(f"s_add_u32 s{S_K0}, s{S_K0}, s{S_TMP+3}")
        a(f"s_and_b32 s{S_K0}, s{S_K0}, 7")
    a(f"s_lshl_b32 s{S_T0}, s{S_TMP+2}, 17")
    a(f"s_lshl_b32 s{S_M0}, s{S_TMP+1}, 8")
    a(f"s_mul_i32 s{S_OBASE}, s{S_TMP+2}, {2*TT_STRIDE}")
    a(f"s_lshl_b32 s{S_TMP+1}, s{S_TMP+1}, 3")
    a(f"s_add_u32 s{S_TMP+1}, s{S_TMP+1}, 64")
    a(f"s_lshl_b32 s{S_TMP+1}, s{S_TMP+1}, 11")
    a(f"s_add_u32 s{S_OBASE}, s{S_OBASE}, s{S_TMP+1}")
    PDB = cfg.get("pdb", 3)
    def touchB(a, where):
        if where == "init":
            lab = a.newlabel("TBi")
            a(f"s_cmp_ge_u32 s{S_WID}, 2")
            a(f"s_cbranch_scc1 {lab}")
            for i in range(4):
                a(f"s_mov_b32 s{R_P+i}, s{R_T+i}")
            a(f"s_lshl_b32 s{S_TMP+2}, s{S_WID}, 6")
            a(f"v_add_u32 v{V_TMP}, s{S_TMP+2}, v{V_LANE}")
            a(f"v_lshlrev_b32 v{VP}, 10, v{V_TMP}")
            a(f"s_add_u32 s{S_PO}, s{S_T0}, 256")
            a(f"s_mov_b32 s{S_PS}, 128")
            a(f"s_mov_b32 s{S_PC}, 14")
            a(f"s_branch {lab}e")
            a.label(lab)
            a(f"s_cmp_eq_u32 s{S_WID}, 2")
            for i in range(4):
                a(f"s_cselect_b32 s{R_P+i}, s{R_M1+i}, s{R_M2+i}")
            a(f"s_lshr_b32 s{S_TMP+2}, s{S_ROT}, 1")
            a(f"s_lshl_b32 s{S_TMP+2}, s{S_TMP+2}, 3")
            a(f"v_bfe_u32 v{V_TMP}, v{V_LANE}, 1, 3")
            a(f"v_add_u32 v{V_TMP}, s{S_TMP+2}, v{V_TMP}")
            a(f"v_mul_u32_u24 v{V_TMP}, 3584, v{V_TMP}")
            a(f"v_and_b32 v{V_TMP+1}, 1, v{V_LANE}")
            a(f"v_lshl_add_u32 v{VP}, v{V_TMP+1}, 7, v{V_TMP}")
            a(f"s_add_u32 s{S_PO}, s{S_M0}, {2*64*3584}")
            a(f"s_mov_b32 s{S_PS}, {64*3584}")
            a(f"s_mov_b32 s{S_PC}, 6")
            a.label(lab + "e")
            for c in range(PDB):
                touch_step(a)
        else:
            lab = a.newlabel("TBj")
            a(f"s_cmp_lg_u32 s{S_PC}, 8")
            a(f"s_cbranch_scc1 {lab}")
            a(f"s_add_u32 s{S_PO}, s{S_PO}, {131072 - 1024}")
            a.label(lab)
            touch_step(a)
    gemm_role(a, "TB", NM=2, LA=1, S=3, nK=8, njobs=2, pitchT=1024, pitchM=3584, cfg=cfg, touch=((lambda a, w: None) if cfg.get('xhot') else touchB))
    a.label("S1_aux")
    aux_role(a, cfg)
    a.label("S1_exit")
    a("s_endpgm")

def stage2(a, cfg):
    D = cfg.get("D2", 8)
    a(f".globl {K2}")
    a(".p2align 8")
    a(f".type {K2},@function")
    a.label(K2)
    a("s_cmp_ge_u32 s2, 256")
    a("s_cbranch_scc1 S2_exit")
    prof_start(a, cfg)
    a("s_load_dwordx2 s[4:5], s[0:1], 80")
    a("s_load_dwordx2 s[6:7], s[0:1], 96")
    a("v_lshrrev_b32 v1, 6, v0")
    a("v_and_b32 v200, 63, v0")
    a("v_readfirstlane_b32 s3, v1")
    a("s_and_b32 s8, s2, 7")
    a("s_lshr_b32 s9, s2, 3")
    a("s_lshl_b32 s10, s8, 2")
    a("s_lshr_b32 s11, s9, 3")
    a("s_add_u32 s10, s10, s11")
    a("s_and_b32 s11, s9, 7")
    a("s_waitcnt lgkmcnt(0)")
    srd(a, 12, 6, A2F_SIZE)
    srd(a, 16, 6, B2F_SIZE, off=B2F)
    srd(a, 20, 6, GATE_SIZE, off=GATE)
    srd(a, 24, 4, 2048*512*2)
    a("v_lshlrev_b32 v201, 4, v200")
    a("v_and_b32 v202, 31, v200")
    a("s_lshl_b32 s28, s10, 6")
    a("v_add_u32 v202, s28, v202")
    a("v_lshlrev_b32 v202, 2, v202")
    a("buffer_load_dword v204, v202, s[20:23], 0 offen")
    a("buffer_load_dword v205, v202, s[20:23], 0 offen offset:128")
    a(f"s_mul_i32 s28, s10, {TT_STRIDE}")
    a(f"s_mul_i32 s29, s11, {TT_STRIDE}")
    a("s_lshl_b32 s30, s3, 15")
    a(f"s_mul_i32 s31, s3, {28*2048}")
    a(f"s_add_u32 s31, s31, {64*2048}")
    a("s_add_u32 s32, s28, s30")
    a("s_add_u32 s33, s29, s30")
    a("s_add_u32 s34, s28, s31")
    a("s_add_u32 s35, s29, s31")
    if cfg.get("touch2", 1):
        SEC = cfg.get("sec", 128)
        srd(a, 36, 6, GATE)
        a("v_lshlrev_b32 v203, 7, v200")
        a("s_lshl_b32 s40, s9, 2")
        a("s_add_u32 s40, s40, s3")
        for i in range(5):
            lab = a.newlabel("S2t")
            a(f"s_add_u32 s41, s40, {128*i}")
            if i == 4:
                a("s_cmp_ge_u32 s41, 528")
                a(f"s_cbranch_scc1 {lab}")
            a("s_lshr_b32 s42, s41, 4")
            a("s_and_b32 s43, s41, 15")
            a("s_sub_u32 s44, s41, 192")
            a(f"s_mul_hi_u32 s45, s44, {(2**32 + 27)//28}")
            a("s_mul_i32 s46, s45, 28")
            a("s_sub_u32 s46, s44, s46")
            a("s_add_u32 s46, s46, 16")
            a("s_cmp_lt_u32 s41, 192")
            a("s_cselect_b32 s42, s42, s45")
            a("s_cselect_b32 s43, s43, s46")
            a("s_lshl_b32 s44, s8, 2")
            a("s_cmp_lt_u32 s42, 4")
            a("s_cselect_b32 s44, s44, 28")
            a("s_add_u32 s44, s44, s42")
            a(f"s_mul_i32 s44, s44, {TT_STRIDE}")
            a("s_lshl_b32 s43, s43, 13")
            a("s_add_u32 s44, s44, s43")
            for h in range(128 // SEC):
                a(f"buffer_load_dword v207, v203, s[36:39], s44 offen offset:{h*64}")
            a.label(lab)
    NS = 44
    rot2 = cfg.get("rot2", 1)
    a("s_lshr_b32 s38, s9, 3")
    if rot2:
        a("s_lshl_b32 s36, s11, 1")
        a("s_lshl_b32 s39, s38, 2")
        a("s_add_u32 s36, s36, s39")
        a("s_and_b32 s36, s36, 15")
        a("s_lshl_b32 s36, s36, 11")
        a("s_mul_i32 s37, s11, 7")
        a("s_lshr_b32 s37, s37, 1")
        a("s_mul_i32 s39, s38, 7")
        a("s_add_u32 s37, s37, s39")
        a("s_cmp_ge_u32 s37, 28")
        a("s_cselect_b32 s39, 28, 0")
        a("s_sub_u32 s37, s37, s39")
        a("s_lshl_b32 s37, s37, 11")
    else:
        a("s_mov_b32 s36, 0")
        a("s_mov_b32 s37, 0")
    lat2 = cfg.get("lat2", 0)
    if lat2:
        G2 = lat2
        a(f"s_mul_i32 s44, s38, {cfg.get('lat2m', 1)}")
        a("s_add_u32 s44, s44, s11")
        for r in range(G2):
            a(f"s_add_u32 s45, s44, {r}")
            a(f"s_and_b32 s45, s45, {G2-1}")
            a(f"s_lshl_b32 s{48+r}, s45, 11")
    def load(i):
        if lat2:
            G2 = lat2
            if i == 16:
                a("s_mov_b32 s32, s34")
                a("s_mov_b32 s33, s35")
            ii = i if i < 16 else i - 16
            b = (i % D) * 16
            n = 16 if i < 16 else 28
            grp = ii & ~(G2 - 1)
            if grp + G2 <= n:
                a(f"s_add_u32 s42, s32, s{48 + (ii & (G2-1))}")
                a(f"s_add_u32 s43, s33, s{48 + (ii & (G2-1))}")
                if grp:
                    a(f"s_add_u32 s42, s42, {grp*2048}")
                    a(f"s_add_u32 s43, s43, {grp*2048}")
            else:
                a(f"s_add_u32 s42, s32, {ii*2048}")
                a(f"s_add_u32 s43, s33, {ii*2048}")
            a(f"buffer_load_dwordx4 {ar(b,4)}, v201, s[12:15], s42 offen")
            a(f"buffer_load_dwordx4 {ar(b+4,4)}, v201, s[12:15], s42 offen offset:1024")
            a(f"buffer_load_dwordx4 {ar(b+8,4)}, v201, s[16:19], s43 offen")
            a(f"buffer_load_dwordx4 {ar(b+12,4)}, v201, s[16:19], s43 offen offset:1024")
            return
        if i == 16:
            a("s_mov_b32 s32, s34")
            a("s_mov_b32 s33, s35")
            a("s_mov_b32 s36, s37")
        n = 16 if i < 16 else 28
        b = (i % D) * 16
        a("s_add_u32 s42, s32, s36")
        a("s_add_u32 s43, s33, s36")
        f2 = " nt" if cfg.get("nt", 0) & 64 else ""
        a(f"buffer_load_dwordx4 {ar(b,4)}, v201, s[12:15], s42 offen{f2}")
        a(f"buffer_load_dwordx4 {ar(b+4,4)}, v201, s[12:15], s42 offen offset:1024{f2}")
        a(f"buffer_load_dwordx4 {ar(b+8,4)}, v201, s[16:19], s43 offen{f2}")
        a(f"buffer_load_dwordx4 {ar(b+12,4)}, v201, s[16:19], s43 offen offset:1024{f2}")
        a("s_add_u32 s36, s36, 2048")
        a(f"s_cmp_eq_u32 s36, {n*2048}")
        a("s_cselect_b32 s36, 0, s36")
    for i in range(D):
        load(i)
    for i in range(128):
        a(f"v_mov_b32 v{i}, 0")
    for i in range(NS):
        out = min(D - 1, NS - 1 - i)
        a(f"s_waitcnt vmcnt({out*4})")
        b = (i % D) * 16
        base = 0 if i < 16 else 64
        for mi in range(2):
            for ni in range(2):
                d = vr(base + (mi * 2 + ni) * 16, 16)
                a(f"v_mfma_f32_32x32x16_bf16 {d}, {ar(b+8+4*mi,4)}, {ar(b+4*ni,4)}, {d}")
        if i + D < NS:
            load(i + D)
    a("s_nop 15")
    a("s_nop 3")
    for mi in range(2):
        for ni in range(2):
            for r in range(16):
                y = (mi * 2 + ni) * 16 + r
                a(f"v_sub_f32 v{y}, v{y}, v{64+y}")
                a(f"v_fma_f32 v{y}, v{y}, v{204+ni}, v{64+y}")
    PIT = 272
    WSZ = 64 * PIT
    a("v_and_b32 v202, 31, v200")
    a(f"v_mul_u32_u24 v202, {PIT}, v202")
    a("v_lshrrev_b32 v203, 5, v200")
    a("v_lshl_add_u32 v202, v203, 4, v202")
    a(f"s_mul_i32 s28, s3, {WSZ}")
    a("v_add_u32 v202, s28, v202")
    for mi in range(2):
        for ni in range(2):
            for q in range(4):
                src = (mi * 2 + ni) * 16 + 4 * q
                off = ni * 32 * PIT + (mi * 32 + 8 * q) * 4
                a(f"ds_write_b128 v202, {vr(src,4)} offset:{off}")
    a("s_waitcnt lgkmcnt(0)")
    a("s_barrier")
    a("s_lshl_b32 s28, s3, 6")
    a("v_add_u32 v203, s28, v200")
    a("v_lshrrev_b32 v206, 2, v203")
    a("v_and_b32 v207, 3, v203")
    a(f"v_mul_u32_u24 v208, {PIT}, v206")
    a("v_lshl_add_u32 v208, v207, 6, v208")
    for w in range(4):
        for q in range(4):
            a(f"ds_read_b128 {vr(w*16+q*4,4)}, v208 offset:{w*WSZ + q*16}")
    a("s_waitcnt lgkmcnt(0)")
    for i in range(16):
        a(f"v_add_f32 v{i}, v{i}, v{16+i}")
        a(f"v_add_f32 v{32+i}, v{32+i}, v{48+i}")
    for i in range(16):
        a(f"v_add_f32 v{i}, v{i}, v{32+i}")
    for i in range(8):
        a(f"v_cvt_pk_bf16_f32 v{64+i}, v{2*i}, v{2*i+1}")
    a("s_lshl_b32 s28, s10, 16")
    a("s_lshl_b32 s29, s11, 7")
    a("s_add_u32 s28, s28, s29")
    a("v_lshlrev_b32 v206, 10, v206")
    a("v_lshl_add_u32 v206, v207, 5, v206")
    a("buffer_store_dwordx4 v[64:67], v206, s[24:27], s28 offen")
    a("buffer_store_dwordx4 v[68:71], v206, s[24:27], s28 offen offset:16")
    prof_end(a, cfg, 6, 3, 1)
    a.label("S2_exit")
    a("s_endpgm")
    return D * 16

def build(cfg):
    a = Asm()
    stage1(a, cfg)
    nacc = stage2(a, cfg)
    lds1 = 3 * 49152
    lds2 = 4 * 64 * 272
    out = HEADER
    out += f"; @launch kernel={K1} grid=(256,1,1) block=(512,1,1) lds={lds1}\n"
    out += f"; @launch kernel={K2} grid=(256,1,1) block=(256,1,1) lds={lds2}\n"
    out += '.amdgcn_target "amdgcn-amd-amdhsa--gfx950"\n.text\n'
    out += a.text()
    out += f""".section .rodata,"a"
.p2align 6
.amdhsa_kernel {K1}
  .amdhsa_next_free_vgpr 256
  .amdhsa_next_free_sgpr 100
  .amdhsa_accum_offset 256
  .amdhsa_group_segment_fixed_size 0
  .amdhsa_kernarg_size 104
  .amdhsa_user_sgpr_count 2
  .amdhsa_user_sgpr_kernarg_segment_ptr 1
  .amdhsa_system_sgpr_workgroup_id_x 1
.end_amdhsa_kernel
.p2align 6
.amdhsa_kernel {K2}
  .amdhsa_next_free_vgpr {256 + nacc}
  .amdhsa_next_free_sgpr 96
  .amdhsa_accum_offset 256
  .amdhsa_group_segment_fixed_size 0
  .amdhsa_kernarg_size 104
  .amdhsa_user_sgpr_count 2
  .amdhsa_user_sgpr_kernarg_segment_ptr 1
  .amdhsa_system_sgpr_workgroup_id_x 1
.end_amdhsa_kernel
"""
    return out

if __name__ == "__main__":
    cfg = {}
    outp = sys.argv[1] if len(sys.argv) > 1 else "gated_mix__spectral_fnet__glu_gated_glu__prompt.s"
    for kv in sys.argv[2:]:
        k, v = kv.split("=")
        cfg[k] = int(v)
    open(outp, "w").write(build(cfg))
    print("wrote", outp)
```

```python
import sys
from gen import Asm, vr, ar, sr, srd, HEADER, K1, K2, A2F, TT_STRIDE, A2F_SIZE, B2F, B2F_SIZE, GATE, GATE_SIZE, PROF, prof_start, prof_end

S_WID = 3
S_XCD, S_IDX = 4, 5
P_AX, P_CR, P_CI, P_HR, P_HI, P_BX, P_WG, P_WU = 16, 18, 20, 22, 24, 26, 28, 30
P_WD, P_GW, P_OUT, P_DBG, P_WS = 32, 34, 36, 38, 40
R_T, R_M1, R_M2, R_O = 44, 48, 52, 56
S_T0, S_M0 = 60, 61
S_SLOT = 62
S_CNT = 63
S_LW = 64
S_LSLOT = 65
S_TMP = 66
S_OBASE = 74
S_K0 = 75
S_KT = 76
S_TO, S_MO = 77, 78
V_LANE = 250
V_TMP = 240
ACC, FR, VT0, VM0, VLT, VLM, VO, VT = 0, 128, 192, 196, 200, 204, 208, 224

class G:
    def __init__(s, a, cfg, tag, NM, LA, S, pitchT, pitchM):
        s.a, s.cfg, s.tag, s.NM, s.LA, s.S, s.pitchT, s.pitchM = a, cfg, tag, NM, LA, S, pitchT, pitchM
        s.SB = 16384 * (1 + NM)
        s.DPT = 4 * (1 + NM)
        s.nsets = 4 if LA >= 2 else 2
        s.R = 2 + NM * 4
        s.SETSZ = 8 + NM * 8
    def setup_compute(s):
        a = s.a
        a(f"s_bfe_u32 s{S_TMP}, s{S_WID}, 0x10001")
        a(f"s_and_b32 s{S_TMP+1}, s{S_WID}, 1")
        a(f"v_and_b32 v{V_TMP}, 31, v{V_LANE}")
        a(f"v_lshrrev_b32 v{V_TMP+1}, 5, v{V_LANE}")
        a(f"v_bfe_u32 v{V_TMP+2}, v{V_LANE}, 1, 3")
        a(f"v_xor_b32 v{V_TMP+1}, v{V_TMP+1}, v{V_TMP+2}")
        a(f"v_lshlrev_b32 v{V_TMP+1}, 4, v{V_TMP+1}")
        a(f"v_lshl_add_u32 v{V_TMP}, v{V_TMP}, 7, v{V_TMP+1}")
        a(f"s_lshl_b32 s{S_TMP+2}, s{S_TMP}, 13")
        a(f"v_add_u32 v{VT0}, s{S_TMP+2}, v{V_TMP}")
        for j in range(1, 4):
            a(f"v_xor_b32 v{VT0+j}, {32*j}, v{VT0}")
        a(f"v_bfe_u32 v{V_TMP}, v{V_LANE}, 2, 2")
        a(f"v_lshrrev_b32 v{V_TMP+1}, 5, v{V_LANE}")
        a(f"v_lshl_add_u32 v{V_TMP+1}, v{V_TMP+1}, 3, v{V_TMP}")
        a(f"v_lshlrev_b32 v{V_TMP+1}, 8, v{V_TMP+1}")
        a(f"v_bfe_u32 v{V_TMP+2}, v{V_LANE}, 4, 1")
        a(f"v_lshl_add_u32 v{V_TMP+1}, v{V_TMP+2}, 5, v{V_TMP+1}")
        a(f"v_and_b32 v{V_TMP+2}, 3, v{V_LANE}")
        a(f"v_lshl_add_u32 v{V_TMP+1}, v{V_TMP+2}, 3, v{V_TMP+1}")
        a(f"v_add_u32 v{V_TMP+1}, 16384, v{V_TMP+1}")
        a(f"s_lshl_b32 s{S_TMP+2}, s{S_TMP+1}, 1")
        for mi in range(2):
            a(f"s_add_u32 s{S_TMP+3}, s{S_TMP+2}, {mi}")
            a(f"v_xor_b32 v{V_TMP+2}, s{S_TMP+3}, v{V_TMP}")
            a(f"v_lshl_add_u32 v{VM0+mi}, v{V_TMP+2}, 6, v{V_TMP+1}")
        a(f"s_mul_i32 s{S_TMP+2}, s{S_TMP}, {TT_STRIDE}")
        a(f"s_lshl_b32 s{S_TMP+3}, s{S_TMP+1}, 13")
        a(f"s_add_u32 s{S_TMP+2}, s{S_TMP+2}, s{S_TMP+3}")
        a(f"v_lshlrev_b32 v{VO}, 4, v{V_LANE}")
        a(f"v_add_u32 v{VO}, s{S_TMP+2}, v{VO}")
        a(f"v_add_u32 v{VO+1}, 4096, v{VO}")
    def setup_loader(s):
        a = s.a
        a(f"s_and_b32 s{S_TMP}, s{S_WID}, 3")
        a(f"s_lshl_b32 s{S_LW}, s{S_TMP}, 12")
        a(f"v_lshrrev_b32 v{V_TMP}, 3, v{V_LANE}")
        a(f"s_lshl_b32 s{S_TMP+1}, s{S_TMP}, 5")
        a(f"v_add_u32 v{V_TMP}, s{S_TMP+1}, v{V_TMP}")
        a(f"v_and_b32 v{V_TMP+1}, 7, v{V_LANE}")
        a(f"v_lshrrev_b32 v{V_TMP+2}, 4, v{V_LANE}")
        a(f"v_xor_b32 v{V_TMP+1}, v{V_TMP+1}, v{V_TMP+2}")
        for i in range(4):
            a(f"v_add_u32 v{V_TMP+3}, {8*i}, v{V_TMP}")
            a(f"v_mul_u32_u24 v{V_TMP+3}, {s.pitchT}, v{V_TMP+3}")
            a(f"v_xor_b32 v{V_TMP+4}, {(i&1)*4}, v{V_TMP+1}")
            a(f"v_lshl_add_u32 v{VLT+i}, v{V_TMP+4}, 4, v{V_TMP+3}")
        a(f"v_lshrrev_b32 v{V_TMP}, 4, v{V_LANE}")
        a(f"v_lshlrev_b32 v{V_TMP+2}, 2, v{V_TMP}")
        a(f"v_and_b32 v{V_TMP+1}, 15, v{V_LANE}")
        a(f"v_xor_b32 v{V_TMP+1}, v{V_TMP+1}, v{V_TMP+2}")
        a(f"s_lshl_b32 s{S_TMP+1}, s{S_TMP}, 4")
        a(f"v_add_u32 v{V_TMP}, s{S_TMP+1}, v{V_TMP}")
        for i in range(4):
            a(f"v_add_u32 v{V_TMP+3}, {4*i}, v{V_TMP}")
            a(f"v_mul_u32_u24 v{V_TMP+3}, {s.pitchM}, v{V_TMP+3}")
            a(f"v_lshl_add_u32 v{VLM+i}, v{V_TMP+1}, 4, v{V_TMP+3}")
    def next_slot(s, reg):
        a = s.a
        a(f"s_add_u32 s{reg}, s{reg}, {s.SB}")
        a(f"s_cmp_eq_u32 s{reg}, {s.S*s.SB}")
        a(f"s_cselect_b32 s{reg}, 0, s{reg}")
    def issue(s, sT, sM):
        a = s.a
        a(f"s_add_u32 s{S_TMP+2}, s{S_LSLOT}, s{S_LW}")
        for i in range(4):
            a(f"s_add_u32 m0, s{S_TMP+2}, {i*1024}")
            a("s_nop 0")
            a(f"buffer_load_dwordx4 v{VLT+i}, s[{R_T}:{R_T+3}], s{sT} offen lds")
        for m in range(s.NM):
            rm = R_M1 if m == 0 else R_M2
            for i in range(4):
                a(f"s_add_u32 m0, s{S_TMP+2}, {16384*(1+m) + i*1024}")
                a("s_nop 0")
                a(f"buffer_load_dwordx4 v{VLM+i}, s[{rm}:{rm+3}], s{sM} offen lds")
        s.next_slot(S_LSLOT)
    def tfrag(s, st, ni): return FR + st * s.SETSZ + ni * 4
    def mfrag(s, st, m, mi): return FR + st * s.SETSZ + 8 + (m * 2 + mi) * 4
    def acc(s, m, mi, ni): return ACC + ((m * 2 + mi) * 2 + ni) * 16
    def reads(s, j, st, aset):
        out = []
        vt = VT + aset * 6
        vm = vt + 4
        for ni in range(2):
            out.append(f"ds_read_b128 {vr(s.tfrag(st, ni), 4)}, v{vt+j} offset:{ni*4096}")
        for m in range(s.NM):
            for mi in range(2):
                for q in range(2):
                    out.append(f"ds_read_b64_tr_b16 {vr(s.mfrag(st, m, mi)+2*q, 2)}, v{vm+mi} offset:{m*16384 + j*4096 + q*1024}")
        return out
    def mfmas(s, st):
        out = []
        for m in range(s.NM):
            for mi in range(2):
                for ni in range(2):
                    d = vr(s.acc(m, mi, ni), 16)
                    out.append(f"v_mfma_f32_32x32x16_bf16 {d}, {vr(s.mfrag(st, m, mi), 4)}, {vr(s.tfrag(st, ni), 4)}, {d}")
        return out
    def set_addr(s, aset):
        vt = VT + aset * 6
        return [f"v_add_u32 v{vt+j}, s{S_SLOT}, v{VT0+j}" for j in range(4)] + [f"v_add_u32 v{vt+4+mi}, s{S_SLOT}, v{VM0+mi}" for mi in range(2)]
    def interleave(s, mf, rd, extra=()):
        a = s.a
        rd = list(rd) + list(extra)
        n = len(mf)
        per = (len(rd) + n - 1) // n if rd else 0
        ri = 0
        for m in mf:
            a(m)
            k = 0
            while ri < len(rd) and k < per:
                a(rd[ri]); ri += 1; k += 1
        while ri < len(rd):
            a(rd[ri]); ri += 1
    def compute_job(s, nK, pre_wait=None, loop_wait=None):
        a, LA, R, nsets = s.a, s.LA, s.R, s.nsets
        for i in range(s.NM * 64):
            a(f"v_mov_b32 v{ACC+i}, 0")
        for x in s.set_addr(0):
            a(x)
        if pre_wait: a(pre_wait)
        a("s_barrier")
        for s_ in range(LA):
            for r_ in s.reads(s_, s_ % nsets, 0):
                a(r_)
        a(f"s_mov_b32 s{S_CNT}, {nK//2}")
        L_loop = a.newlabel(f"{s.tag}_cl"); L_last = a.newlabel(f"{s.tag}_cz")
        def tile(aset, last):
            for j in range(4):
                extra = []
                if j == 0 and not last:
                    s.next_slot(S_SLOT)
                    extra = s.set_addr(aset ^ 1)
                if j == 4 - LA and not last:
                    a("s_waitcnt lgkmcnt(0)" + (" " + loop_wait if loop_wait else ""))
                    a("s_barrier")
                else:
                    if j + LA < 4 or not last:
                        a(f"s_waitcnt lgkmcnt({(LA-1)*R})")
                    else:
                        a(f"s_waitcnt lgkmcnt({min(3-j, LA-1)*R})")
                if j + LA < 4:
                    rd = s.reads(j + LA, (j + LA) % nsets, aset)
                elif not last:
                    rd = s.reads((j + LA) % 4, (j + LA) % nsets, aset ^ 1)
                else:
                    rd = []
                s.interleave(s.mfmas(j % nsets), rd, extra)
        a.label(L_loop)
        tile(0, False)
        a(f"s_sub_u32 s{S_CNT}, s{S_CNT}, 1")
        a(f"s_cmp_eq_u32 s{S_CNT}, 0")
        a(f"s_cbranch_scc1 {L_last}")
        tile(1, False)
        a(f"s_branch {L_loop}")
        a.label(L_last)
        tile(1, True)
        a("s_nop 15")
        a("s_nop 3")
    def store_half(s, src16, mi, ni, b, tmp):
        a = s.a
        for h in range(2):
            g_ = 2 * b + h
            a(f"v_cvt_pk_bf16_f32 v{tmp+2*h}, v{src16+4*g_}, v{src16+4*g_+1}")
            a(f"v_cvt_pk_bf16_f32 v{tmp+2*h+1}, v{src16+4*g_+2}, v{src16+4*g_+3}")
        a("s_nop 1")
        a(f"v_permlane32_swap_b32 v{tmp}, v{tmp+2}")
        a(f"v_permlane32_swap_b32 v{tmp+1}, v{tmp+3}")
        off = (mi * 2 + b) * 2048 + ni * 1024
        a(f"buffer_store_dwordx4 {vr(tmp,4)}, v{VO + (off >= 4096)}, s[{R_O}:{R_O+3}], s{S_OBASE} offen offset:{off & 4095}{ {0: '', 1: ' sc1', 2: ' sc0 sc1', 3: ' nt', 4: ' sc0'}[s.cfg.get('stfl', 0)] }")
    def glu_half(s, mi, ni, b):
        a = s.a
        g_ = s.acc(0, mi, ni) + 8 * b; u_ = s.acc(1, mi, ni) + 8 * b
        for i in range(0, 8, 2):
            a(f"v_pk_mul_f32 {vr(g_+i,2)}, {vr(g_+i,2)}, s[{S_TMP+4}:{S_TMP+5}]")
        for i in range(8):
            a(f"v_exp_f32 v{g_+i}, v{g_+i}")
        for i in range(0, 8, 2):
            a(f"v_pk_add_f32 {vr(g_+i,2)}, {vr(g_+i,2)}, s[{S_TMP+6}:{S_TMP+7}]")
        for i in range(8):
            a(f"v_rcp_f32 v{g_+i}, v{g_+i}")
        for i in range(0, 8, 2):
            a(f"v_pk_mul_f32 {vr(g_+i,2)}, {vr(g_+i,2)}, {vr(u_+i,2)}")
        s.store_half(s.acc(0, mi, ni), mi, ni, b, FR + 32 + ((mi * 2 + ni) * 2 + b) * 4)
    def glu_const(s):
        a = s.a
        a(f"s_mov_b32 s{S_TMP+4}, 0xbfb8aa3b")
        a(f"s_mov_b32 s{S_TMP+5}, 0xbfb8aa3b")
        a(f"s_mov_b32 s{S_TMP+6}, 1.0")
        a(f"s_mov_b32 s{S_TMP+7}, 1.0")

def typeA(a, cfg):
    g = G(a, cfg, "TA", 1, cfg.get("LA_A", 2), 4, 4096, 1024)
    nK = 32
    a(f"s_cmp_ge_u32 s{S_WID}, 4")
    a("s_cbranch_scc1 TA_loader")
    g.setup_compute()
    a(f"s_mov_b32 s{S_SLOT}, 0")
    g.compute_job(nK)
    for mi in range(2):
        for ni in range(2):
            for b in range(2):
                g.store_half(g.acc(0, mi, ni), mi, ni, b, FR + 32 + ((mi * 2 + ni) * 2 + b) * 4)
    a("s_branch TA_end")
    a.label("TA_loader")
    g.setup_loader()
    a(f"s_mov_b32 s{S_LSLOT}, 0")
    lat = cfg.get("lat", 0); LG = 4
    a(f"s_mov_b32 s{S_KT}, 0")
    def issue():
        if lat:
            a(f"s_add_u32 s{S_TMP+3}, s{S_KT}, s{S_K0}")
            a(f"s_and_b32 s{S_TMP+3}, s{S_TMP+3}, {LG-1}")
            a(f"s_andn2_b32 s{S_TMP+4}, s{S_KT}, {LG-1}")
            a(f"s_or_b32 s{S_TMP+3}, s{S_TMP+3}, s{S_TMP+4}")
            a(f"s_add_u32 s{S_KT}, s{S_KT}, 1")
            a(f"s_lshl_b32 s{S_TMP+4}, s{S_TMP+3}, 7")
            a(f"s_add_u32 s{S_TO}, s{S_T0}, s{S_TMP+4}")
            a(f"s_lshl_b32 s{S_TMP+4}, s{S_TMP+3}, 16")
            a(f"s_add_u32 s{S_MO}, s{S_M0}, s{S_TMP+4}")
            g.issue(S_TO, S_MO)
        else:
            g.issue(S_T0, S_M0)
            a(f"s_add_u32 s{S_T0}, s{S_T0}, 128")
            a(f"s_add_u32 s{S_M0}, s{S_M0}, 65536")
    for t in range(3):
        issue()
    a(f"s_mov_b32 s{S_CNT}, {nK-3}")
    a.label("TA_ll")
    a(f"s_waitcnt vmcnt({2*g.DPT})")
    a("s_barrier")
    issue()
    a(f"s_sub_u32 s{S_CNT}, s{S_CNT}, 1")
    a(f"s_cmp_lg_u32 s{S_CNT}, 0")
    a("s_cbranch_scc1 TA_ll")
    for t in range(3):
        a(f"s_waitcnt vmcnt({(2-t)*g.DPT})")
        a("s_barrier")
    a.label("TA_end")
    prof_end(a, cfg, P_WS, S_WID, 0)
    dprof_end(a, cfg, P_DBG, 1)
    a("s_endpgm")

def typeB(a, cfg):
    g = G(a, cfg, "TB", 2, 1, 3, 1024, 3584)
    nK = 8
    SB, DPT = g.SB, g.DPT
    g.setup_compute()
    g.setup_loader()
    g.glu_const()
    a(f"s_cmp_ge_u32 s{S_WID}, 4")
    a("s_cbranch_scc1 TB_g1")
    def adv(t):
        if t % nK == nK - 1:
            a(f"s_add_u32 s{S_T0}, s{S_T0}, {128*1024 - (nK-1)*128}")
            a(f"s_sub_u32 s{S_M0}, s{S_M0}, {(nK-1)*64*3584}")
        else:
            a(f"s_add_u32 s{S_T0}, s{S_T0}, 128")
            a(f"s_add_u32 s{S_M0}, s{S_M0}, {64*3584}")
    a(f"s_mov_b32 s{S_SLOT}, 0")
    g.compute_job(nK)
    a(f"s_add_u32 s{S_T0}, s{S_T0}, {128*1024 + 2*128}")
    a(f"s_add_u32 s{S_M0}, s{S_M0}, {2*64*3584}")
    a(f"s_mov_b32 s{S_LSLOT}, {(10 % 3)*SB}")
    chunks = [(mi, ni, b) for mi in range(2) for ni in range(2) for b in range(2)]
    for t in range(8, 16):
        if t >= 10:
            newer = (DPT if t + 1 <= 15 else 0) + 1
            a(f"s_waitcnt vmcnt({newer})")
        a("s_barrier")
        if t + 2 <= 15:
            g.issue(S_T0, S_M0)
            adv(t + 2)
        g.glu_half(*chunks[t - 8])
    split = cfg.get("esplit", 1)
    if split:
        a(f"s_add_u32 s{S_OBASE}, s{S_OBASE}, {2*TT_STRIDE}")
        a(f"s_and_b32 s{S_TMP}, s{S_WID}, 3")
        a(f"s_lshl_b32 s{S_TMP}, s{S_TMP}, 14")
        a(f"v_lshlrev_b32 v{V_TMP}, 4, v{V_LANE}")
        a(f"v_add_u32 v{V_TMP}, s{S_TMP}, v{V_TMP}")
        a("s_barrier")
        a("s_barrier")
        for m in range(2):
            for ni in range(2):
                for q in range(4):
                    a(f"ds_read_b128 {vr(g.acc(m, 1, ni) + 4*q, 4)}, v{V_TMP} offset:{((m*2+ni)*4+q)*1024}")
        a("s_waitcnt lgkmcnt(0)")
        for c in chunks[4:]:
            g.glu_half(*c)
    a("s_branch TB_end")
    a.label("TB_g1")
    a(f"s_mov_b32 s{S_LSLOT}, 0")
    for t in range(2):
        g.issue(S_T0, S_M0); adv(t)
    a(f"s_mov_b32 s{S_CNT}, 5")
    a.label("TB_ll")
    a(f"s_waitcnt vmcnt({DPT})")
    a("s_barrier")
    g.issue(S_T0, S_M0); adv(2)
    a(f"s_sub_u32 s{S_CNT}, s{S_CNT}, 1")
    a(f"s_cmp_lg_u32 s{S_CNT}, 0")
    a("s_cbranch_scc1 TB_ll")
    for t in range(5, 8):
        a(f"s_waitcnt vmcnt({DPT})")
        a("s_barrier")
        g.issue(S_T0, S_M0); adv(t + 2)
    a(f"s_add_u32 s{S_OBASE}, s{S_OBASE}, {2*TT_STRIDE}")
    a(f"s_mov_b32 s{S_SLOT}, {(8 % 3)*SB}")
    g.compute_job(nK, pre_wait=f"s_waitcnt vmcnt({DPT})", loop_wait="vmcnt(0)")
    if split:
        a(f"s_and_b32 s{S_TMP}, s{S_WID}, 3")
        a(f"s_lshl_b32 s{S_TMP}, s{S_TMP}, 14")
        a(f"v_lshlrev_b32 v{V_TMP}, 4, v{V_LANE}")
        a(f"v_add_u32 v{V_TMP}, s{S_TMP}, v{V_TMP}")
        a("s_barrier")
        for m in range(2):
            for ni in range(2):
                for q in range(4):
                    a(f"ds_write_b128 v{V_TMP}, {vr(g.acc(m, 1, ni) + 4*q, 4)} offset:{((m*2+ni)*4+q)*1024}")
        a("s_waitcnt lgkmcnt(0)")
        a("s_barrier")
        for c in chunks[:4]:
            g.glu_half(*c)
    else:
        for c in chunks:
            g.glu_half(*c)
    a.label("TB_end")
    prof_end(a, cfg, P_WS, S_WID, 0)
    dprof_end(a, cfg, P_DBG, 2)
    a("s_endpgm")

import gen
def dprof_start(a, cfg):
    if cfg.get("dprof"):
        a("s_memrealtime s[80:81]")
def dprof_end(a, cfg, pdbg, word):
    if cfg.get("dprof"):
        a("s_memrealtime s[84:85]")
        a(f"s_mov_b32 s88, s{pdbg}")
        a(f"s_mov_b32 s89, s{pdbg+1}")
        a("s_mov_b32 s90, 256")
        a("s_mov_b32 s91, 0x00020000")
        a("s_waitcnt lgkmcnt(0)")
        a("s_and_b32 s80, s80, 0x7fffffff")
        a("s_and_b32 s84, s84, 0x7fffffff")
        a("s_sub_u32 s86, 0x7fffffff, s80")
        a("v_mov_b32 v252, s86")
        a("v_mov_b32 v253, s84")
        a("v_mov_b32 v251, 0")
        a("s_mov_b64 exec, 1")
        a("buffer_atomic_umax v252, v251, s[88:91], 0 offen")
        a(f"buffer_atomic_umax v253, v251, s[88:91], 0 offen offset:{word*4}")
def stage1(a, cfg):
    a(f".globl {K1}")
    a(".p2align 8")
    a(f".type {K1},@function")
    a.label(K1)
    a("s_cmp_ge_u32 s2, 256")
    a("s_cbranch_scc1 S1_exit")
    prof_start(a, cfg)
    dprof_start(a, cfg)
    a("s_load_dwordx16 s[16:31], s[0:1], 0")
    a("s_load_dwordx8 s[32:39], s[0:1], 64")
    a("s_load_dwordx2 s[40:41], s[0:1], 96")
    a("v_lshrrev_b32 v1, 6, v0")
    a(f"v_and_b32 v{V_LANE}, 63, v0")
    a(f"v_readfirstlane_b32 s{S_WID}, v1")
    a(f"s_and_b32 s{S_XCD}, s2, 7")
    a(f"s_lshr_b32 s{S_IDX}, s2, 3")
    a("s_waitcnt lgkmcnt(0)")
    a(f"s_cmp_ge_u32 s{S_IDX}, 30")
    a("s_cbranch_scc1 S1_aux")
    srd(a, R_O, P_WS, A2F_SIZE)
    if cfg.get("bfirst", 1):
        a(f"s_cmp_lt_u32 s{S_IDX}, 14")
        a(f"s_cselect_b32 s{S_TMP}, 16, -14")
        a(f"s_add_u32 s{S_IDX}, s{S_IDX}, s{S_TMP}")
    a(f"s_cmp_ge_u32 s{S_IDX}, 16")
    a("s_cbranch_scc1 S1_typeB")
    a(f"s_lshl_b32 s{S_TMP}, s{S_XCD}, 2")
    a(f"s_lshr_b32 s{S_TMP+1}, s{S_IDX}, 2")
    a(f"s_add_u32 s{S_TMP}, s{S_TMP}, s{S_TMP+1}")
    a(f"s_and_b32 s{S_TMP+1}, s{S_IDX}, 3")
    a(f"s_lshr_b32 s{S_K0}, s{S_IDX}, 2")
    a(f"s_add_u32 s{S_K0}, s{S_K0}, s{S_TMP+1}")
    a(f"s_and_b32 s{S_K0}, s{S_K0}, 3")
    a(f"s_cmp_ge_u32 s{S_TMP}, 16")
    a(f"s_cselect_b32 s{S_TMP+2}, s{P_CI}, s{P_CR}")
    a(f"s_cselect_b32 s{S_TMP+3}, s{P_CI+1}, s{P_CR+1}")
    a(f"s_cselect_b32 s{S_TMP+4}, 32, 0")
    srd(a, R_T, S_TMP+2, 2048*2048*2)
    srd(a, R_M1, P_AX, 2048*512*2)
    a(f"s_and_b32 s{S_TMP}, s{S_TMP}, 15")
    a(f"s_lshl_b32 s{S_T0}, s{S_TMP}, 19")
    a(f"s_lshl_b32 s{S_M0}, s{S_TMP+1}, 8")
    a(f"s_mul_i32 s{S_OBASE}, s{S_TMP}, {2*TT_STRIDE}")
    a(f"s_lshl_b32 s{S_TMP+1}, s{S_TMP+1}, 3")
    a(f"s_add_u32 s{S_TMP+1}, s{S_TMP+1}, s{S_TMP+4}")
    a(f"s_lshl_b32 s{S_TMP+1}, s{S_TMP+1}, 11")
    a(f"s_add_u32 s{S_OBASE}, s{S_OBASE}, s{S_TMP+1}")
    typeA(a, cfg)
    a.label("S1_typeB")
    srd(a, R_T, P_AX, 2048*512*2)
    srd(a, R_M1, P_WG, 512*1792*2)
    srd(a, R_M2, P_WU, 512*1792*2)
    a(f"s_sub_u32 s{S_TMP+1}, s{S_IDX}, 16")
    a(f"s_lshl_b32 s{S_TMP+1}, s{S_TMP+1}, 1")
    a(f"s_mul_i32 s{S_TMP+2}, s{S_XCD}, 28")
    a(f"s_add_u32 s{S_TMP+2}, s{S_TMP+2}, s{S_TMP+1}")
    a(f"s_lshr_b32 s{S_TMP+1}, s{S_TMP+2}, 4")
    a(f"s_and_b32 s{S_TMP+2}, s{S_TMP+2}, 15")
    a(f"s_lshl_b32 s{S_T0}, s{S_TMP+2}, 17")
    a(f"s_lshl_b32 s{S_M0}, s{S_TMP+1}, 8")
    a(f"s_mul_i32 s{S_OBASE}, s{S_TMP+2}, {2*TT_STRIDE}")
    a(f"s_lshl_b32 s{S_TMP+1}, s{S_TMP+1}, 3")
    a(f"s_add_u32 s{S_TMP+1}, s{S_TMP+1}, 64")
    a(f"s_lshl_b32 s{S_TMP+1}, s{S_TMP+1}, 11")
    a(f"s_add_u32 s{S_OBASE}, s{S_OBASE}, s{S_TMP+1}")
    typeB(a, cfg)
    a.label("S1_aux")
    gen.aux_role(a, cfg)
    a.label("S1_exit")
    a("s_endpgm")

def build(cfg):
    cfg.setdefault("touch2", 0); cfg.setdefault("rot2", 0)
    a = Asm()
    stage1(a, cfg)
    nacc = gen.stage2(a, cfg)
    lds1 = 3 * 49152
    lds2 = 4 * 64 * 272
    out = HEADER
    out += f"; @launch kernel={K1} grid=(256,1,1) block=(512,1,1) lds={lds1}\n"
    out += f"; @launch kernel={K2} grid=(256,1,1) block=(256,1,1) lds={lds2}\n"
    out += '.amdgcn_target "amdgcn-amd-amdhsa--gfx950"\n.text\n'
    out += a.text()
    out += f""".section .rodata,"a"
.p2align 6
.amdhsa_kernel {K1}
  .amdhsa_next_free_vgpr 256
  .amdhsa_next_free_sgpr 100
  .amdhsa_accum_offset 256
  .amdhsa_group_segment_fixed_size 0
  .amdhsa_kernarg_size 104
  .amdhsa_user_sgpr_count 2
  .amdhsa_user_sgpr_kernarg_segment_ptr 1
  .amdhsa_system_sgpr_workgroup_id_x 1
.end_amdhsa_kernel
.p2align 6
.amdhsa_kernel {K2}
  .amdhsa_next_free_vgpr {256 + nacc}
  .amdhsa_next_free_sgpr 96
  .amdhsa_accum_offset 256
  .amdhsa_group_segment_fixed_size 0
  .amdhsa_kernarg_size 104
  .amdhsa_user_sgpr_count 2
  .amdhsa_user_sgpr_kernarg_segment_ptr 1
  .amdhsa_system_sgpr_workgroup_id_x 1
.end_amdhsa_kernel
"""
    return out

if __name__ == "__main__":
    cfg = {}
    outp = sys.argv[1]
    for kv in sys.argv[2:]:
        k, v = kv.split("=")
        cfg[k] = int(v)
    open(outp, "w").write(build(cfg))
    print("wrote", outp)
```

```python
import sys
from gen import Asm, vr, ar, sr, srd, HEADER, K1, K2, A2F, TT_STRIDE, A2F_SIZE, B2F, B2F_SIZE, GATE, GATE_SIZE, PROF, prof_start, prof_end

S_WID = 3
S_XCD, S_IDX = 4, 5
P_AX, P_CR, P_CI, P_HR, P_HI, P_BX, P_WG, P_WU = 16, 18, 20, 22, 24, 26, 28, 30
P_WD, P_GW, P_OUT, P_DBG, P_WS = 32, 34, 36, 38, 40
R_T, R_M1, R_M2, R_O = 44, 48, 52, 56
S_T0, S_M0 = 60, 61
S_SLOT = 62
S_CNT = 63
S_LW = 64
S_LSLOT = 65
S_TMP = 66
S_OBASE = 74
S_K0 = 75
S_KT = 76
S_TO, S_MO = 77, 78
V_LANE = 250
V_TMP = 240
ACC, FR, VT0, VM0, VLT, VLM, VO, VT = 0, 128, 192, 196, 200, 204, 208, 224

class G:
    def __init__(s, a, cfg, tag, NM, LA, S, pitchT, pitchM):
        s.a, s.cfg, s.tag, s.NM, s.LA, s.S, s.pitchT, s.pitchM = a, cfg, tag, NM, LA, S, pitchT, pitchM
        s.SB = 16384 * (1 + NM)
        s.DPT = 4 * (1 + NM)
        s.nsets = 4 if LA >= 2 else 2
        s.R = 2 + NM * 4
        s.SETSZ = 8 + NM * 8
        nt = cfg.get("nt", 0)
        s.flT = " nt" if nt & (1 if NM == 1 else 2) else ""
        s.flM = " nt" if nt & (2 if NM == 1 else 4) else ""
    def setup_compute(s):
        a = s.a
        a(f"s_bfe_u32 s{S_TMP}, s{S_WID}, 0x10001")
        a(f"s_and_b32 s{S_TMP+1}, s{S_WID}, 1")
        a(f"v_and_b32 v{V_TMP}, 31, v{V_LANE}")
        a(f"v_lshrrev_b32 v{V_TMP+1}, 5, v{V_LANE}")
        a(f"v_bfe_u32 v{V_TMP+2}, v{V_LANE}, 1, 3")
        a(f"v_xor_b32 v{V_TMP+1}, v{V_TMP+1}, v{V_TMP+2}")
        a(f"v_lshlrev_b32 v{V_TMP+1}, 4, v{V_TMP+1}")
        a(f"v_lshl_add_u32 v{V_TMP}, v{V_TMP}, 7, v{V_TMP+1}")
        a(f"s_lshl_b32 s{S_TMP+2}, s{S_TMP}, 13")
        a(f"v_add_u32 v{VT0}, s{S_TMP+2}, v{V_TMP}")
        for j in range(1, 4):
            a(f"v_xor_b32 v{VT0+j}, {32*j}, v{VT0}")
        a(f"v_bfe_u32 v{V_TMP}, v{V_LANE}, 2, 2")
        a(f"v_lshrrev_b32 v{V_TMP+1}, 5, v{V_LANE}")
        a(f"v_lshl_add_u32 v{V_TMP+1}, v{V_TMP+1}, 3, v{V_TMP}")
        a(f"v_lshlrev_b32 v{V_TMP+1}, 8, v{V_TMP+1}")
        a(f"v_bfe_u32 v{V_TMP+2}, v{V_LANE}, 4, 1")
        a(f"v_lshl_add_u32 v{V_TMP+1}, v{V_TMP+2}, 5, v{V_TMP+1}")
        a(f"v_and_b32 v{V_TMP+2}, 3, v{V_LANE}")
        a(f"v_lshl_add_u32 v{V_TMP+1}, v{V_TMP+2}, 3, v{V_TMP+1}")
        a(f"v_add_u32 v{V_TMP+1}, 16384, v{V_TMP+1}")
        a(f"s_lshl_b32 s{S_TMP+2}, s{S_TMP+1}, 1")
        for mi in range(2):
            a(f"s_add_u32 s{S_TMP+3}, s{S_TMP+2}, {mi}")
            a(f"v_xor_b32 v{V_TMP+2}, s{S_TMP+3}, v{V_TMP}")
            a(f"v_lshl_add_u32 v{VM0+mi}, v{V_TMP+2}, 6, v{V_TMP+1}")
        a(f"s_mul_i32 s{S_TMP+2}, s{S_TMP}, {TT_STRIDE}")
        a(f"s_lshl_b32 s{S_TMP+3}, s{S_TMP+1}, 13")
        a(f"s_add_u32 s{S_TMP+2}, s{S_TMP+2}, s{S_TMP+3}")
        a(f"v_lshlrev_b32 v{VO}, 4, v{V_LANE}")
        a(f"v_add_u32 v{VO}, s{S_TMP+2}, v{VO}")
        a(f"v_add_u32 v{VO+1}, 4096, v{VO}")
    def setup_loader(s):
        a = s.a
        a(f"s_and_b32 s{S_TMP}, s{S_WID}, 3")
        a(f"s_lshl_b32 s{S_LW}, s{S_TMP}, 12")
        a(f"v_lshrrev_b32 v{V_TMP}, 3, v{V_LANE}")
        a(f"s_lshl_b32 s{S_TMP+1}, s{S_TMP}, 5")
        a(f"v_add_u32 v{V_TMP}, s{S_TMP+1}, v{V_TMP}")
        a(f"v_and_b32 v{V_TMP+1}, 7, v{V_LANE}")
        a(f"v_lshrrev_b32 v{V_TMP+2}, 4, v{V_LANE}")
        a(f"v_xor_b32 v{V_TMP+1}, v{V_TMP+1}, v{V_TMP+2}")
        for i in range(4):
            a(f"v_add_u32 v{V_TMP+3}, {8*i}, v{V_TMP}")
            a(f"v_mul_u32_u24 v{V_TMP+3}, {s.pitchT}, v{V_TMP+3}")
            a(f"v_xor_b32 v{V_TMP+4}, {(i&1)*4}, v{V_TMP+1}")
            a(f"v_lshl_add_u32 v{VLT+i}, v{V_TMP+4}, 4, v{V_TMP+3}")
        a(f"v_lshrrev_b32 v{V_TMP}, 4, v{V_LANE}")
        a(f"v_lshlrev_b32 v{V_TMP+2}, 2, v{V_TMP}")
        a(f"v_and_b32 v{V_TMP+1}, 15, v{V_LANE}")
        a(f"v_xor_b32 v{V_TMP+1}, v{V_TMP+1}, v{V_TMP+2}")
        a(f"s_lshl_b32 s{S_TMP+1}, s{S_TMP}, 4")
        a(f"v_add_u32 v{V_TMP}, s{S_TMP+1}, v{V_TMP}")
        for i in range(4):
            a(f"v_add_u32 v{V_TMP+3}, {4*i}, v{V_TMP}")
            a(f"v_mul_u32_u24 v{V_TMP+3}, {s.pitchM}, v{V_TMP+3}")
            a(f"v_lshl_add_u32 v{VLM+i}, v{V_TMP+1}, 4, v{V_TMP+3}")
    def next_slot(s, reg):
        a = s.a
        a(f"s_add_u32 s{reg}, s{reg}, {s.SB}")
        a(f"s_cmp_eq_u32 s{reg}, {s.S*s.SB}")
        a(f"s_cselect_b32 s{reg}, 0, s{reg}")
    def issue(s, sT, sM):
        a = s.a
        a(f"s_add_u32 s{S_TMP+2}, s{S_LSLOT}, s{S_LW}")
        for i in range(4):
            a(f"s_add_u32 m0, s{S_TMP+2}, {i*1024}")
            a("s_nop 0")
            a(f"buffer_load_dwordx4 v{VLT+i}, s[{R_T}:{R_T+3}], s{sT} offen{s.flT} lds")
        for m in range(s.NM):
            rm = R_M1 if m == 0 else R_M2
            for i in range(4):
                a(f"s_add_u32 m0, s{S_TMP+2}, {16384*(1+m) + i*1024}")
                a("s_nop 0")
                a(f"buffer_load_dwordx4 v{VLM+i}, s[{rm}:{rm+3}], s{sM} offen{s.flM} lds")
        s.next_slot(S_LSLOT)
    def tfrag(s, st, ni): return FR + st * s.SETSZ + ni * 4
    def mfrag(s, st, m, mi): return FR + st * s.SETSZ + 8 + (m * 2 + mi) * 4
    def acc(s, m, mi, ni): return ACC + ((m * 2 + mi) * 2 + ni) * 16
    def reads(s, j, st, aset):
        out = []
        vt = VT + aset * 6
        vm = vt + 4
        for ni in range(2):
            out.append(f"ds_read_b128 {vr(s.tfrag(st, ni), 4)}, v{vt+j} offset:{ni*4096}")
        for m in range(s.NM):
            for mi in range(2):
                for q in range(2):
                    out.append(f"ds_read_b64_tr_b16 {vr(s.mfrag(st, m, mi)+2*q, 2)}, v{vm+mi} offset:{m*16384 + j*4096 + q*1024}")
        return out
    def mfmas(s, st):
        out = []
        for m in range(s.NM):
            for mi in range(2):
                for ni in range(2):
                    d = vr(s.acc(m, mi, ni), 16)
                    out.append(f"v_mfma_f32_32x32x16_bf16 {d}, {vr(s.mfrag(st, m, mi), 4)}, {vr(s.tfrag(st, ni), 4)}, {d}")
        return out
    def set_addr(s, aset):
        vt = VT + aset * 6
        return [f"v_add_u32 v{vt+j}, s{S_SLOT}, v{VT0+j}" for j in range(4)] + [f"v_add_u32 v{vt+4+mi}, s{S_SLOT}, v{VM0+mi}" for mi in range(2)]
    def interleave(s, mf, rd, extra=()):
        a = s.a
        rd = list(rd) + list(extra)
        n = len(mf)
        per = (len(rd) + n - 1) // n if rd else 0
        ri = 0
        for m in mf:
            a(m)
            k = 0
            while ri < len(rd) and k < per:
                a(rd[ri]); ri += 1; k += 1
        while ri < len(rd):
            a(rd[ri]); ri += 1
    def compute_job(s, nK, pre_wait=None, loop_wait=None):
        a, LA, R, nsets = s.a, s.LA, s.R, s.nsets
        for i in range(s.NM * 64):
            a(f"v_mov_b32 v{ACC+i}, 0")
        for x in s.set_addr(0):
            a(x)
        if pre_wait: a(pre_wait)
        a("s_barrier")
        for s_ in range(LA):
            for r_ in s.reads(s_, s_ % nsets, 0):
                a(r_)
        a(f"s_mov_b32 s{S_CNT}, {nK//2}")
        L_loop = a.newlabel(f"{s.tag}_cl"); L_last = a.newlabel(f"{s.tag}_cz")
        def tile(aset, last):
            for j in range(4):
                extra = []
                if j == 0 and not last:
                    s.next_slot(S_SLOT)
                    extra = s.set_addr(aset ^ 1)
                if j == 4 - LA and not last:
                    a("s_waitcnt lgkmcnt(0)" + (" " + loop_wait if loop_wait else ""))
                    a("s_barrier")
                else:
                    if j + LA < 4 or not last:
                        a(f"s_waitcnt lgkmcnt({(LA-1)*R})")
                    else:
                        a(f"s_waitcnt lgkmcnt({min(3-j, LA-1)*R})")
                if j + LA < 4:
                    rd = s.reads(j + LA, (j + LA) % nsets, aset)
                elif not last:
                    rd = s.reads((j + LA) % 4, (j + LA) % nsets, aset ^ 1)
                else:
                    rd = []
                s.interleave(s.mfmas(j % nsets), rd, extra)
        a.label(L_loop)
        tile(0, False)
        a(f"s_sub_u32 s{S_CNT}, s{S_CNT}, 1")
        a(f"s_cmp_eq_u32 s{S_CNT}, 0")
        a(f"s_cbranch_scc1 {L_last}")
        tile(1, False)
        a(f"s_branch {L_loop}")
        a.label(L_last)
        tile(1, True)
        a("s_nop 15")
        a("s_nop 3")
    def store_half(s, src16, mi, ni, b, tmp):
        a = s.a
        for h in range(2):
            g_ = 2 * b + h
            a(f"v_cvt_pk_bf16_f32 v{tmp+2*h}, v{src16+4*g_}, v{src16+4*g_+1}")
            a(f"v_cvt_pk_bf16_f32 v{tmp+2*h+1}, v{src16+4*g_+2}, v{src16+4*g_+3}")
        a("s_nop 1")
        a(f"v_permlane32_swap_b32 v{tmp}, v{tmp+2}")
        a(f"v_permlane32_swap_b32 v{tmp+1}, v{tmp+3}")
        off = (mi * 2 + b) * 2048 + ni * 1024
        a(f"buffer_store_dwordx4 {vr(tmp,4)}, v{VO + (off >= 4096)}, s[{R_O}:{R_O+3}], s{S_OBASE} offen offset:{off & 4095}{ {0: '', 1: ' sc1', 2: ' sc0 sc1', 3: ' nt', 4: ' sc0'}[s.cfg.get('stfl', 0)] }")
    def glu_half(s, mi, ni, b):
        a = s.a
        g_ = s.acc(0, mi, ni) + 8 * b; u_ = s.acc(1, mi, ni) + 8 * b
        for i in range(0, 8, 2):
            a(f"v_pk_mul_f32 {vr(g_+i,2)}, {vr(g_+i,2)}, s[{S_TMP+4}:{S_TMP+5}]")
        for i in range(8):
            a(f"v_exp_f32 v{g_+i}, v{g_+i}")
        for i in range(0, 8, 2):
            a(f"v_pk_add_f32 {vr(g_+i,2)}, {vr(g_+i,2)}, s[{S_TMP+6}:{S_TMP+7}]")
        for i in range(8):
            a(f"v_rcp_f32 v{g_+i}, v{g_+i}")
        for i in range(0, 8, 2):
            a(f"v_pk_mul_f32 {vr(g_+i,2)}, {vr(g_+i,2)}, {vr(u_+i,2)}")
        s.store_half(s.acc(0, mi, ni), mi, ni, b, FR + 32 + ((mi * 2 + ni) * 2 + b) * 4)
    def glu_const(s):
        a = s.a
        a(f"s_mov_b32 s{S_TMP+4}, 0xbfb8aa3b")
        a(f"s_mov_b32 s{S_TMP+5}, 0xbfb8aa3b")
        a(f"s_mov_b32 s{S_TMP+6}, 1.0")
        a(f"s_mov_b32 s{S_TMP+7}, 1.0")

def typeA(a, cfg):
    g = G(a, cfg, "TA", 1, cfg.get("LA_A", 2), 4, 4096, 1024)
    nK = 32
    a(f"s_cmp_ge_u32 s{S_WID}, 4")
    a("s_cbranch_scc1 TA_loader")
    g.setup_compute()
    a(f"s_mov_b32 s{S_SLOT}, 0")
    g.compute_job(nK)
    for mi in range(2):
        for ni in range(2):
            for b in range(2):
                g.store_half(g.acc(0, mi, ni), mi, ni, b, FR + 32 + ((mi * 2 + ni) * 2 + b) * 4)
    a("s_branch TA_end")
    a.label("TA_loader")
    g.setup_loader()
    a(f"s_mov_b32 s{S_LSLOT}, 0")
    lat = cfg.get("lat", 0); LG = cfg.get("latg", 4)
    if LG == 8: a(f"s_lshl_b32 s{S_K0}, s{S_K0}, 1")
    if LG == 16: a(f"s_lshl_b32 s{S_K0}, s{S_K0}, 2")
    if LG == 32: a(f"s_lshl_b32 s{S_K0}, s{S_K0}, 3")
    if LG == 2: a(f"s_and_b32 s{S_K0}, s{S_K0}, 1")
    a(f"s_mov_b32 s{S_KT}, 0")
    def issue():
        if lat:
            a(f"s_add_u32 s{S_TMP+3}, s{S_KT}, s{S_K0}")
            a(f"s_and_b32 s{S_TMP+3}, s{S_TMP+3}, {LG-1}")
            a(f"s_andn2_b32 s{S_TMP+4}, s{S_KT}, {LG-1}")
            a(f"s_or_b32 s{S_TMP+3}, s{S_TMP+3}, s{S_TMP+4}")
            a(f"s_add_u32 s{S_KT}, s{S_KT}, 1")
            a(f"s_lshl_b32 s{S_TMP+4}, s{S_TMP+3}, 7")
            a(f"s_add_u32 s{S_TO}, s{S_T0}, s{S_TMP+4}")
            a(f"s_lshl_b32 s{S_TMP+4}, s{S_TMP+3}, 16")
            a(f"s_add_u32 s{S_MO}, s{S_M0}, s{S_TMP+4}")
            g.issue(S_TO, S_MO)
        else:
            g.issue(S_T0, S_M0)
            a(f"s_add_u32 s{S_T0}, s{S_T0}, 128")
            a(f"s_add_u32 s{S_M0}, s{S_M0}, 65536")
    for t in range(3):
        issue()
    a(f"s_mov_b32 s{S_CNT}, {nK-3}")
    a.label("TA_ll")
    a(f"s_waitcnt vmcnt({2*g.DPT})")
    a("s_barrier")
    issue()
    a(f"s_sub_u32 s{S_CNT}, s{S_CNT}, 1")
    a(f"s_cmp_lg_u32 s{S_CNT}, 0")
    a("s_cbranch_scc1 TA_ll")
    for t in range(3):
        a(f"s_waitcnt vmcnt({(2-t)*g.DPT})")
        a("s_barrier")
    a.label("TA_end")
    prof_end(a, cfg, P_WS, S_WID, 0)
    dprof_end(a, cfg, P_DBG, 1)
    a("s_endpgm")

def typeB(a, cfg):
    g = G(a, cfg, "TB", 2, 1, 3, 1024, 3584)
    nK = 8
    SB, DPT = g.SB, g.DPT
    g.setup_compute()
    g.setup_loader()
    g.glu_const()
    def issue(t):
        a(f"s_add_u32 s{S_TMP+3}, s{S_K0}, {t & 7}")
        a(f"s_and_b32 s{S_TMP+3}, s{S_TMP+3}, 7")
        a(f"s_lshl_b32 s{S_TO}, s{S_TMP+3}, 7")
        a(f"s_add_u32 s{S_TO}, s{S_TO}, s{S_T0}")
        if t >= 8:
            a(f"s_add_u32 s{S_TO}, s{S_TO}, {128*1024}")
        a(f"s_mul_i32 s{S_MO}, s{S_TMP+3}, {64*3584}")
        a(f"s_add_u32 s{S_MO}, s{S_MO}, s{S_M0}")
        g.issue(S_TO, S_MO)
    a(f"s_cmp_ge_u32 s{S_WID}, 4")
    a("s_cbranch_scc1 TB_g1")
    a(f"s_mov_b32 s{S_SLOT}, 0")
    g.compute_job(nK)
    a(f"s_mov_b32 s{S_LSLOT}, {(10 % 3)*SB}")
    chunks = [(mi, ni, b) for mi in range(2) for ni in range(2) for b in range(2)]
    for t in range(8, 16):
        if t >= 10:
            newer = (DPT if t + 1 <= 15 else 0) + 1
            a(f"s_waitcnt vmcnt({newer})")
        a("s_barrier")
        if t + 2 <= 15:
            issue(t + 2)
        g.glu_half(*chunks[t - 8])
    a("s_branch TB_end")
    a.label("TB_g1")
    a(f"s_mov_b32 s{S_LSLOT}, 0")
    for t in range(2):
        issue(t)
    for t in range(8):
        a(f"s_waitcnt vmcnt({DPT})")
        a("s_barrier")
        issue(t + 2)
    a(f"s_add_u32 s{S_OBASE}, s{S_OBASE}, {2*TT_STRIDE}")
    a(f"s_mov_b32 s{S_SLOT}, {(8 % 3)*SB}")
    g.compute_job(nK, pre_wait=f"s_waitcnt vmcnt({DPT})", loop_wait="vmcnt(0)")
    for c in chunks:
        g.glu_half(*c)
    a.label("TB_end")
    prof_end(a, cfg, P_WS, S_WID, 0)
    dprof_end(a, cfg, P_DBG, 2)
    a("s_endpgm")

import gen
def dprof_start(a, cfg):
    if cfg.get("dprof"):
        a("s_memrealtime s[80:81]")
def dprof_end(a, cfg, pdbg, word):
    if cfg.get("dprof"):
        a("s_memrealtime s[84:85]")
        a(f"s_mov_b32 s88, s{pdbg}")
        a(f"s_mov_b32 s89, s{pdbg+1}")
        a("s_mov_b32 s90, 256")
        a("s_mov_b32 s91, 0x00020000")
        a("s_waitcnt lgkmcnt(0)")
        a("s_and_b32 s80, s80, 0x7fffffff")
        a("s_and_b32 s84, s84, 0x7fffffff")
        a("s_sub_u32 s86, 0x7fffffff, s80")
        a("v_mov_b32 v252, s86")
        a("v_mov_b32 v253, s84")
        a("v_mov_b32 v251, 0")
        a("s_mov_b64 exec, 1")
        a("buffer_atomic_umax v252, v251, s[88:91], 0 offen")
        a(f"buffer_atomic_umax v253, v251, s[88:91], 0 offen offset:{word*4}")
def stage1(a, cfg):
    a(f".globl {K1}")
    a(".p2align 8")
    a(f".type {K1},@function")
    a.label(K1)
    a("s_cmp_ge_u32 s2, 256")
    a("s_cbranch_scc1 S1_exit")
    prof_start(a, cfg)
    dprof_start(a, cfg)
    a("s_load_dwordx16 s[16:31], s[0:1], 0")
    a("s_load_dwordx8 s[32:39], s[0:1], 64")
    a("s_load_dwordx2 s[40:41], s[0:1], 96")
    a("v_lshrrev_b32 v1, 6, v0")
    a(f"v_and_b32 v{V_LANE}, 63, v0")
    a(f"v_readfirstlane_b32 s{S_WID}, v1")
    a(f"s_and_b32 s{S_XCD}, s2, 7")
    a(f"s_lshr_b32 s{S_IDX}, s2, 3")
    a("s_waitcnt lgkmcnt(0)")
    a(f"s_cmp_ge_u32 s{S_IDX}, 30")
    a("s_cbranch_scc1 S1_aux")
    srd(a, R_O, P_WS, A2F_SIZE)
    if cfg.get("bfirst", 1):
        a(f"s_cmp_lt_u32 s{S_IDX}, 14")
        a(f"s_cselect_b32 s{S_TMP}, 16, -14")
        a(f"s_add_u32 s{S_IDX}, s{S_IDX}, s{S_TMP}")
    a(f"s_cmp_ge_u32 s{S_IDX}, 16")
    a("s_cbranch_scc1 S1_typeB")
    a(f"s_lshl_b32 s{S_TMP}, s{S_XCD}, 2")
    a(f"s_lshr_b32 s{S_TMP+1}, s{S_IDX}, 2")
    a(f"s_add_u32 s{S_TMP}, s{S_TMP}, s{S_TMP+1}")
    a(f"s_and_b32 s{S_TMP+1}, s{S_IDX}, 3")
    a(f"s_lshr_b32 s{S_K0}, s{S_IDX}, 2")
    a(f"s_add_u32 s{S_K0}, s{S_K0}, s{S_TMP+1}")
    a(f"s_and_b32 s{S_K0}, s{S_K0}, 3")
    a(f"s_cmp_ge_u32 s{S_TMP}, 16")
    a(f"s_cselect_b32 s{S_TMP+2}, s{P_CI}, s{P_CR}")
    a(f"s_cselect_b32 s{S_TMP+3}, s{P_CI+1}, s{P_CR+1}")
    a(f"s_cselect_b32 s{S_TMP+4}, 32, 0")
    srd(a, R_T, S_TMP+2, 2048*2048*2)
    srd(a, R_M1, P_AX, 2048*512*2)
    a(f"s_and_b32 s{S_TMP}, s{S_TMP}, 15")
    a(f"s_lshl_b32 s{S_T0}, s{S_TMP}, 19")
    a(f"s_lshl_b32 s{S_M0}, s{S_TMP+1}, 8")
    a(f"s_mul_i32 s{S_OBASE}, s{S_TMP}, {2*TT_STRIDE}")
    a(f"s_lshl_b32 s{S_TMP+1}, s{S_TMP+1}, 3")
    a(f"s_add_u32 s{S_TMP+1}, s{S_TMP+1}, s{S_TMP+4}")
    a(f"s_lshl_b32 s{S_TMP+1}, s{S_TMP+1}, 11")
    a(f"s_add_u32 s{S_OBASE}, s{S_OBASE}, s{S_TMP+1}")
    typeA(a, cfg)
    a.label("S1_typeB")
    srd(a, R_T, P_AX, 2048*512*2)
    srd(a, R_M1, P_WG, 512*1792*2)
    srd(a, R_M2, P_WU, 512*1792*2)
    a(f"s_sub_u32 s{S_TMP+1}, s{S_IDX}, 16")
    a(f"s_lshl_b32 s{S_TMP+1}, s{S_TMP+1}, 1")
    a(f"s_mul_i32 s{S_TMP+2}, s{S_XCD}, 28")
    a(f"s_add_u32 s{S_TMP+2}, s{S_TMP+2}, s{S_TMP+1}")
    a(f"s_lshr_b32 s{S_TMP+1}, s{S_TMP+2}, 4")
    a(f"s_and_b32 s{S_TMP+2}, s{S_TMP+2}, 15")
    if cfg.get("rotb", 0):
        a(f"s_lshr_b32 s{S_K0}, s{S_TMP+2}, 1")
        a(f"s_mul_i32 s{S_TMP+3}, s{S_TMP+1}, {cfg.get('cbmul', 0)}")
        a(f"s_add_u32 s{S_K0}, s{S_K0}, s{S_TMP+3}")
    else:
        a(f"s_mov_b32 s{S_K0}, 0")
    a(f"s_lshl_b32 s{S_T0}, s{S_TMP+2}, 17")
    a(f"s_lshl_b32 s{S_M0}, s{S_TMP+1}, 8")
    a(f"s_mul_i32 s{S_OBASE}, s{S_TMP+2}, {2*TT_STRIDE}")
    a(f"s_lshl_b32 s{S_TMP+1}, s{S_TMP+1}, 3")
    a(f"s_add_u32 s{S_TMP+1}, s{S_TMP+1}, 64")
    a(f"s_lshl_b32 s{S_TMP+1}, s{S_TMP+1}, 11")
    a(f"s_add_u32 s{S_OBASE}, s{S_OBASE}, s{S_TMP+1}")
    typeB(a, cfg)
    a.label("S1_aux")
    gen.aux_role(a, cfg)
    a.label("S1_exit")
    a("s_endpgm")

def build(cfg):
    cfg.setdefault("touch2", 0); cfg.setdefault("rot2", 0)
    a = Asm()
    stage1(a, cfg)
    nacc = gen.stage2(a, cfg)
    lds1 = 3 * 49152
    lds2 = 4 * 64 * 272
    out = HEADER
    out += f"; @launch kernel={K1} grid=(256,1,1) block=(512,1,1) lds={lds1}\n"
    out += f"; @launch kernel={K2} grid=(256,1,1) block=(256,1,1) lds={lds2}\n"
    out += '.amdgcn_target "amdgcn-amd-amdhsa--gfx950"\n.text\n'
    out += a.text()
    out += f""".section .rodata,"a"
.p2align 6
.amdhsa_kernel {K1}
  .amdhsa_next_free_vgpr 256
  .amdhsa_next_free_sgpr 100
  .amdhsa_accum_offset 256
  .amdhsa_group_segment_fixed_size 0
  .amdhsa_kernarg_size 104
  .amdhsa_user_sgpr_count 2
  .amdhsa_user_sgpr_kernarg_segment_ptr 1
  .amdhsa_system_sgpr_workgroup_id_x 1
.end_amdhsa_kernel
.p2align 6
.amdhsa_kernel {K2}
  .amdhsa_next_free_vgpr {256 + nacc}
  .amdhsa_next_free_sgpr 96
  .amdhsa_accum_offset 256
  .amdhsa_group_segment_fixed_size 0
  .amdhsa_kernarg_size 104
  .amdhsa_user_sgpr_count 2
  .amdhsa_user_sgpr_kernarg_segment_ptr 1
  .amdhsa_system_sgpr_workgroup_id_x 1
.end_amdhsa_kernel
"""
    return out

if __name__ == "__main__":
    cfg = {}
    outp = sys.argv[1]
    for kv in sys.argv[2:]:
        k, v = kv.split("=")
        cfg[k] = int(v)
    open(outp, "w").write(build(cfg))
    print("wrote", outp)
```

```python
import sys
from gen import Asm, vr, ar, sr, srd, HEADER, K1, K2, A2F, TT_STRIDE, A2F_SIZE, B2F, B2F_SIZE, GATE, GATE_SIZE, PROF, prof_start, prof_end

S_WID = 3
S_XCD, S_IDX = 4, 5
P_AX, P_CR, P_CI, P_HR, P_HI, P_BX, P_WG, P_WU = 16, 18, 20, 22, 24, 26, 28, 30
P_WD, P_GW, P_OUT, P_DBG, P_WS = 32, 34, 36, 38, 40
R_T, R_M1, R_M2, R_O = 44, 48, 52, 56
S_T0, S_M0 = 60, 61
S_SLOT = 62
S_CNT = 63
S_LW = 64
S_LSLOT = 65
S_TMP = 66
S_OBASE = 74
S_K0 = 75
S_KT = 76
S_TO, S_MO = 77, 78
V_LANE = 250
V_TMP = 240
ACC, FR, VT0, VM0, VLT, VLM, VO, VT = 0, 128, 192, 196, 200, 204, 208, 224

class G:
    def __init__(s, a, cfg, tag, NM, LA, S, pitchT, pitchM):
        s.a, s.cfg, s.tag, s.NM, s.LA, s.S, s.pitchT, s.pitchM = a, cfg, tag, NM, LA, S, pitchT, pitchM
        s.SB = 16384 * (1 + NM)
        s.DPT = 4 * (1 + NM)
        s.nsets = 4 if LA >= 2 else 2
        s.R = 2 + NM * 4
        s.SETSZ = 8 + NM * 8
        nt = cfg.get("nt", 0)
        s.flT = " nt" if nt & (1 if NM == 1 else 2) else ""
        s.flM = " nt" if nt & (2 if NM == 1 else 4) else ""
    def setup_compute(s):
        a = s.a
        a(f"s_bfe_u32 s{S_TMP}, s{S_WID}, 0x10001")
        a(f"s_and_b32 s{S_TMP+1}, s{S_WID}, 1")
        a(f"v_and_b32 v{V_TMP}, 31, v{V_LANE}")
        a(f"v_lshrrev_b32 v{V_TMP+1}, 5, v{V_LANE}")
        a(f"v_bfe_u32 v{V_TMP+2}, v{V_LANE}, 1, 3")
        a(f"v_xor_b32 v{V_TMP+1}, v{V_TMP+1}, v{V_TMP+2}")
        a(f"v_lshlrev_b32 v{V_TMP+1}, 4, v{V_TMP+1}")
        a(f"v_lshl_add_u32 v{V_TMP}, v{V_TMP}, 7, v{V_TMP+1}")
        a(f"s_lshl_b32 s{S_TMP+2}, s{S_TMP}, 13")
        a(f"v_add_u32 v{VT0}, s{S_TMP+2}, v{V_TMP}")
        for j in range(1, 4):
            a(f"v_xor_b32 v{VT0+j}, {32*j}, v{VT0}")
        a(f"v_bfe_u32 v{V_TMP}, v{V_LANE}, 2, 2")
        a(f"v_lshrrev_b32 v{V_TMP+1}, 5, v{V_LANE}")
        a(f"v_lshl_add_u32 v{V_TMP+1}, v{V_TMP+1}, 3, v{V_TMP}")
        a(f"v_lshlrev_b32 v{V_TMP+1}, 8, v{V_TMP+1}")
        a(f"v_bfe_u32 v{V_TMP+2}, v{V_LANE}, 4, 1")
        a(f"v_lshl_add_u32 v{V_TMP+1}, v{V_TMP+2}, 5, v{V_TMP+1}")
        a(f"v_and_b32 v{V_TMP+2}, 3, v{V_LANE}")
        a(f"v_lshl_add_u32 v{V_TMP+1}, v{V_TMP+2}, 3, v{V_TMP+1}")
        a(f"v_add_u32 v{V_TMP+1}, 16384, v{V_TMP+1}")
        a(f"s_lshl_b32 s{S_TMP+2}, s{S_TMP+1}, 1")
        for mi in range(2):
            a(f"s_add_u32 s{S_TMP+3}, s{S_TMP+2}, {mi}")
            a(f"v_xor_b32 v{V_TMP+2}, s{S_TMP+3}, v{V_TMP}")
            a(f"v_lshl_add_u32 v{VM0+mi}, v{V_TMP+2}, 6, v{V_TMP+1}")
        a(f"s_mul_i32 s{S_TMP+2}, s{S_TMP}, {TT_STRIDE}")
        a(f"s_lshl_b32 s{S_TMP+3}, s{S_TMP+1}, 13")
        a(f"s_add_u32 s{S_TMP+2}, s{S_TMP+2}, s{S_TMP+3}")
        a(f"v_lshlrev_b32 v{VO}, 4, v{V_LANE}")
        a(f"v_add_u32 v{VO}, s{S_TMP+2}, v{VO}")
        a(f"v_add_u32 v{VO+1}, 4096, v{VO}")
    def setup_loader(s):
        a = s.a
        a(f"s_and_b32 s{S_TMP}, s{S_WID}, 3")
        a(f"s_lshl_b32 s{S_LW}, s{S_TMP}, 12")
        a(f"v_lshrrev_b32 v{V_TMP}, 3, v{V_LANE}")
        a(f"s_lshl_b32 s{S_TMP+1}, s{S_TMP}, 5")
        a(f"v_add_u32 v{V_TMP}, s{S_TMP+1}, v{V_TMP}")
        a(f"v_and_b32 v{V_TMP+1}, 7, v{V_LANE}")
        a(f"v_lshrrev_b32 v{V_TMP+2}, 4, v{V_LANE}")
        a(f"v_xor_b32 v{V_TMP+1}, v{V_TMP+1}, v{V_TMP+2}")
        for i in range(4):
            a(f"v_add_u32 v{V_TMP+3}, {8*i}, v{V_TMP}")
            a(f"v_mul_u32_u24 v{V_TMP+3}, {s.pitchT}, v{V_TMP+3}")
            a(f"v_xor_b32 v{V_TMP+4}, {(i&1)*4}, v{V_TMP+1}")
            a(f"v_lshl_add_u32 v{VLT+i}, v{V_TMP+4}, 4, v{V_TMP+3}")
        a(f"v_lshrrev_b32 v{V_TMP}, 4, v{V_LANE}")
        a(f"v_lshlrev_b32 v{V_TMP+2}, 2, v{V_TMP}")
        a(f"v_and_b32 v{V_TMP+1}, 15, v{V_LANE}")
        a(f"v_xor_b32 v{V_TMP+1}, v{V_TMP+1}, v{V_TMP+2}")
        a(f"s_lshl_b32 s{S_TMP+1}, s{S_TMP}, 4")
        a(f"v_add_u32 v{V_TMP}, s{S_TMP+1}, v{V_TMP}")
        for i in range(4):
            a(f"v_add_u32 v{V_TMP+3}, {4*i}, v{V_TMP}")
            a(f"v_mul_u32_u24 v{V_TMP+3}, {s.pitchM}, v{V_TMP+3}")
            a(f"v_lshl_add_u32 v{VLM+i}, v{V_TMP+1}, 4, v{V_TMP+3}")
    def next_slot(s, reg):
        a = s.a
        a(f"s_add_u32 s{reg}, s{reg}, {s.SB}")
        a(f"s_cmp_eq_u32 s{reg}, {s.S*s.SB}")
        a(f"s_cselect_b32 s{reg}, 0, s{reg}")
    def issue(s, sT, sM):
        a = s.a
        a(f"s_add_u32 s{S_TMP+2}, s{S_LSLOT}, s{S_LW}")
        for i in range(4):
            a(f"s_add_u32 m0, s{S_TMP+2}, {i*1024}")
            a("s_nop 0")
            a(f"buffer_load_dwordx4 v{VLT+i}, s[{R_T}:{R_T+3}], s{sT} offen{s.flT} lds")
        for m in range(s.NM):
            rm = R_M1 if m == 0 else R_M2
            for i in range(4):
                a(f"s_add_u32 m0, s{S_TMP+2}, {16384*(1+m) + i*1024}")
                a("s_nop 0")
                a(f"buffer_load_dwordx4 v{VLM+i}, s[{rm}:{rm+3}], s{sM} offen{s.flM} lds")
        s.next_slot(S_LSLOT)
    def tfrag(s, st, ni): return FR + st * s.SETSZ + ni * 4
    def mfrag(s, st, m, mi): return FR + st * s.SETSZ + 8 + (m * 2 + mi) * 4
    def acc(s, m, mi, ni): return ACC + ((m * 2 + mi) * 2 + ni) * 16
    def reads(s, j, st, aset):
        out = []
        vt = VT + aset * 6
        vm = vt + 4
        for ni in range(2):
            out.append(f"ds_read_b128 {vr(s.tfrag(st, ni), 4)}, v{vt+j} offset:{ni*4096}")
        for m in range(s.NM):
            for mi in range(2):
                for q in range(2):
                    out.append(f"ds_read_b64_tr_b16 {vr(s.mfrag(st, m, mi)+2*q, 2)}, v{vm+mi} offset:{m*16384 + j*4096 + q*1024}")
        return out
    def mfmas(s, st):
        out = []
        for m in range(s.NM):
            for mi in range(2):
                for ni in range(2):
                    d = vr(s.acc(m, mi, ni), 16)
                    out.append(f"v_mfma_f32_32x32x16_bf16 {d}, {vr(s.mfrag(st, m, mi), 4)}, {vr(s.tfrag(st, ni), 4)}, {d}")
        return out
    def set_addr(s, aset):
        vt = VT + aset * 6
        return [f"v_add_u32 v{vt+j}, s{S_SLOT}, v{VT0+j}" for j in range(4)] + [f"v_add_u32 v{vt+4+mi}, s{S_SLOT}, v{VM0+mi}" for mi in range(2)]
    def interleave(s, mf, rd, extra=()):
        a = s.a
        rd = list(rd) + list(extra)
        n = len(mf)
        per = (len(rd) + n - 1) // n if rd else 0
        ri = 0
        for m in mf:
            a(m)
            k = 0
            while ri < len(rd) and k < per:
                a(rd[ri]); ri += 1; k += 1
        while ri < len(rd):
            a(rd[ri]); ri += 1
    def compute_job(s, nK, pre_wait=None, loop_wait=None):
        a, LA, R, nsets = s.a, s.LA, s.R, s.nsets
        for i in range(s.NM * 64):
            a(f"v_mov_b32 v{ACC+i}, 0")
        for x in s.set_addr(0):
            a(x)
        if pre_wait: a(pre_wait)
        a("s_barrier")
        for s_ in range(LA):
            for r_ in s.reads(s_, s_ % nsets, 0):
                a(r_)
        a(f"s_mov_b32 s{S_CNT}, {nK//2}")
        L_loop = a.newlabel(f"{s.tag}_cl"); L_last = a.newlabel(f"{s.tag}_cz")
        def tile(aset, last):
            for j in range(4):
                extra = []
                if j == 0 and not last:
                    s.next_slot(S_SLOT)
                    extra = s.set_addr(aset ^ 1)
                if j == 4 - LA and not last:
                    a("s_waitcnt lgkmcnt(0)" + (" " + loop_wait if loop_wait else ""))
                    a("s_barrier")
                else:
                    if j + LA < 4 or not last:
                        a(f"s_waitcnt lgkmcnt({(LA-1)*R})")
                    else:
                        a(f"s_waitcnt lgkmcnt({min(3-j, LA-1)*R})")
                if j + LA < 4:
                    rd = s.reads(j + LA, (j + LA) % nsets, aset)
                elif not last:
                    rd = s.reads((j + LA) % 4, (j + LA) % nsets, aset ^ 1)
                else:
                    rd = []
                s.interleave(s.mfmas(j % nsets), rd, extra)
        a.label(L_loop)
        tile(0, False)
        a(f"s_sub_u32 s{S_CNT}, s{S_CNT}, 1")
        a(f"s_cmp_eq_u32 s{S_CNT}, 0")
        a(f"s_cbranch_scc1 {L_last}")
        tile(1, False)
        a(f"s_branch {L_loop}")
        a.label(L_last)
        tile(1, True)
        a("s_nop 15")
        a("s_nop 3")
    def store_half(s, src16, mi, ni, b, tmp):
        a = s.a
        for h in range(2):
            g_ = 2 * b + h
            a(f"v_cvt_pk_bf16_f32 v{tmp+2*h}, v{src16+4*g_}, v{src16+4*g_+1}")
            a(f"v_cvt_pk_bf16_f32 v{tmp+2*h+1}, v{src16+4*g_+2}, v{src16+4*g_+3}")
        a("s_nop 1")
        a(f"v_permlane32_swap_b32 v{tmp}, v{tmp+2}")
        a(f"v_permlane32_swap_b32 v{tmp+1}, v{tmp+3}")
        off = (mi * 2 + b) * 2048 + ni * 1024
        a(f"buffer_store_dwordx4 {vr(tmp,4)}, v{VO + (off >= 4096)}, s[{R_O}:{R_O+3}], s{S_OBASE} offen offset:{off & 4095}{ {0: '', 1: ' sc1', 2: ' sc0 sc1', 3: ' nt', 4: ' sc0'}[s.cfg.get('stfl', 0)] }")
    def glu_half(s, mi, ni, b):
        a = s.a
        g_ = s.acc(0, mi, ni) + 8 * b; u_ = s.acc(1, mi, ni) + 8 * b
        for i in range(0, 8, 2):
            a(f"v_pk_mul_f32 {vr(g_+i,2)}, {vr(g_+i,2)}, s[{S_TMP+4}:{S_TMP+5}]")
        for i in range(8):
            a(f"v_exp_f32 v{g_+i}, v{g_+i}")
        for i in range(0, 8, 2):
            a(f"v_pk_add_f32 {vr(g_+i,2)}, {vr(g_+i,2)}, s[{S_TMP+6}:{S_TMP+7}]")
        for i in range(8):
            a(f"v_rcp_f32 v{g_+i}, v{g_+i}")
        for i in range(0, 8, 2):
            a(f"v_pk_mul_f32 {vr(g_+i,2)}, {vr(g_+i,2)}, {vr(u_+i,2)}")
        s.store_half(s.acc(0, mi, ni), mi, ni, b, FR + 32 + ((mi * 2 + ni) * 2 + b) * 4)
    def glu_const(s):
        a = s.a
        a(f"s_mov_b32 s{S_TMP+4}, 0xbfb8aa3b")
        a(f"s_mov_b32 s{S_TMP+5}, 0xbfb8aa3b")
        a(f"s_mov_b32 s{S_TMP+6}, 1.0")
        a(f"s_mov_b32 s{S_TMP+7}, 1.0")

def typeA(a, cfg):
    g = G(a, cfg, "TA", 1, cfg.get("LA_A", 2), 4, 4096, 1024)
    nK = 32
    a(f"s_cmp_ge_u32 s{S_WID}, 4")
    a("s_cbranch_scc1 TA_loader")
    g.setup_compute()
    a(f"s_mov_b32 s{S_SLOT}, 0")
    g.compute_job(nK)
    for mi in range(2):
        for ni in range(2):
            for b in range(2):
                g.store_half(g.acc(0, mi, ni), mi, ni, b, FR + 32 + ((mi * 2 + ni) * 2 + b) * 4)
    a("s_branch TA_end")
    a.label("TA_loader")
    g.setup_loader()
    a(f"s_mov_b32 s{S_LSLOT}, 0")
    lat = cfg.get("lat", 0); LG = cfg.get("latg", 4)
    if LG == 8: a(f"s_lshl_b32 s{S_K0}, s{S_K0}, 1")
    if LG == 16: a(f"s_lshl_b32 s{S_K0}, s{S_K0}, 2")
    if LG == 32: a(f"s_lshl_b32 s{S_K0}, s{S_K0}, 3")
    if LG == 2: a(f"s_and_b32 s{S_K0}, s{S_K0}, 1")
    a(f"s_mov_b32 s{S_KT}, 0")
    def issue():
        if lat:
            a(f"s_add_u32 s{S_TMP+3}, s{S_KT}, s{S_K0}")
            a(f"s_and_b32 s{S_TMP+3}, s{S_TMP+3}, {LG-1}")
            a(f"s_andn2_b32 s{S_TMP+4}, s{S_KT}, {LG-1}")
            a(f"s_or_b32 s{S_TMP+3}, s{S_TMP+3}, s{S_TMP+4}")
            a(f"s_add_u32 s{S_KT}, s{S_KT}, 1")
            a(f"s_lshl_b32 s{S_TMP+4}, s{S_TMP+3}, 7")
            a(f"s_add_u32 s{S_TO}, s{S_T0}, s{S_TMP+4}")
            a(f"s_lshl_b32 s{S_TMP+4}, s{S_TMP+3}, 16")
            a(f"s_add_u32 s{S_MO}, s{S_M0}, s{S_TMP+4}")
            g.issue(S_TO, S_MO)
        else:
            g.issue(S_T0, S_M0)
            a(f"s_add_u32 s{S_T0}, s{S_T0}, 128")
            a(f"s_add_u32 s{S_M0}, s{S_M0}, 65536")
    for t in range(3):
        issue()
    a(f"s_mov_b32 s{S_CNT}, {nK-3}")
    a.label("TA_ll")
    a(f"s_waitcnt vmcnt({2*g.DPT})")
    a("s_barrier")
    issue()
    a(f"s_sub_u32 s{S_CNT}, s{S_CNT}, 1")
    a(f"s_cmp_lg_u32 s{S_CNT}, 0")
    a("s_cbranch_scc1 TA_ll")
    for t in range(3):
        a(f"s_waitcnt vmcnt({(2-t)*g.DPT})")
        a("s_barrier")
    a.label("TA_end")
    prof_end(a, cfg, P_WS, S_WID, 0)
    dprof_end(a, cfg, P_DBG, 1)
    a("s_endpgm")

def typeB(a, cfg):
    g = G(a, cfg, "TB", 2, 1, 3, 1024, 3584)
    nK = 8
    SB, DPT = g.SB, g.DPT
    g.setup_compute()
    g.setup_loader()
    g.glu_const()
    def issue(t):
        a(f"s_add_u32 s{S_TMP+3}, s{S_K0}, {t & 7}")
        a(f"s_and_b32 s{S_TMP+3}, s{S_TMP+3}, 7")
        a(f"s_lshl_b32 s{S_TO}, s{S_TMP+3}, 7")
        a(f"s_add_u32 s{S_TO}, s{S_TO}, s{S_T0}")
        if t >= 8:
            a(f"s_add_u32 s{S_TO}, s{S_TO}, {128*1024}")
        a(f"s_mul_i32 s{S_MO}, s{S_TMP+3}, {64*3584}")
        a(f"s_add_u32 s{S_MO}, s{S_MO}, s{S_M0}")
        g.issue(S_TO, S_MO)
    a(f"s_cmp_ge_u32 s{S_WID}, 4")
    a("s_cbranch_scc1 TB_g1")
    if cfg.get("xtouch", 0):
        nb = cfg["xtouch"]
        a(f"v_lshrrev_b32 v{V_TMP}, 3, v{V_LANE}")
        a(f"s_lshl_b32 s{S_TMP+2}, s{S_WID}, 3")
        a(f"v_add_u32 v{V_TMP}, s{S_TMP+2}, v{V_TMP}")
        a(f"v_lshlrev_b32 v{V_TMP}, 10, v{V_TMP}")
        a(f"v_and_b32 v{V_TMP+1}, 7, v{V_LANE}")
        a(f"v_lshl_add_u32 v{V_TMP}, v{V_TMP+1}, 7, v{V_TMP}")
        a(f"s_mov_b32 s{S_TMP+2}, s{S_T0}")
        for i in range(nb):
            a(f"buffer_load_dword v{V_TMP+5}, v{V_TMP}, s[{R_T}:{R_T+3}], s{S_TMP+2} offen")
            a(f"s_add_u32 s{S_TMP+2}, s{S_TMP+2}, 32768")
    a(f"s_mov_b32 s{S_SLOT}, 0")
    g.compute_job(nK)
    a(f"s_mov_b32 s{S_LSLOT}, {(10 % 3)*SB}")
    chunks = [(mi, ni, b) for mi in range(2) for ni in range(2) for b in range(2)]
    for t in range(8, 16):
        if t >= 10:
            newer = (DPT if t + 1 <= 15 else 0) + 1
            a(f"s_waitcnt vmcnt({newer})")
        a("s_barrier")
        if t + 2 <= 15:
            issue(t + 2)
        g.glu_half(*chunks[t - 8])
    a("s_branch TB_end")
    a.label("TB_g1")
    a(f"s_mov_b32 s{S_LSLOT}, 0")
    for t in range(2):
        issue(t)
    for t in range(8):
        a(f"s_waitcnt vmcnt({DPT})")
        a("s_barrier")
        issue(t + 2)
    a(f"s_add_u32 s{S_OBASE}, s{S_OBASE}, {2*TT_STRIDE}")
    a(f"s_mov_b32 s{S_SLOT}, {(8 % 3)*SB}")
    g.compute_job(nK, pre_wait=f"s_waitcnt vmcnt({DPT})", loop_wait="vmcnt(0)")
    for c in chunks:
        g.glu_half(*c)
    a.label("TB_end")
    prof_end(a, cfg, P_WS, S_WID, 0)
    dprof_end(a, cfg, P_DBG, 2)
    a("s_endpgm")

import gen
def dprof_start(a, cfg):
    if cfg.get("dprof"):
        a("s_memrealtime s[80:81]")
def dprof_end(a, cfg, pdbg, word):
    if cfg.get("dprof"):
        a("s_memrealtime s[84:85]")
        a(f"s_mov_b32 s88, s{pdbg}")
        a(f"s_mov_b32 s89, s{pdbg+1}")
        a("s_mov_b32 s90, 256")
        a("s_mov_b32 s91, 0x00020000")
        a("s_waitcnt lgkmcnt(0)")
        a("s_and_b32 s80, s80, 0x7fffffff")
        a("s_and_b32 s84, s84, 0x7fffffff")
        a("s_sub_u32 s86, 0x7fffffff, s80")
        a("v_mov_b32 v252, s86")
        a("v_mov_b32 v253, s84")
        a("v_mov_b32 v251, 0")
        a("s_mov_b64 exec, 1")
        a("buffer_atomic_umax v252, v251, s[88:91], 0 offen")
        a(f"buffer_atomic_umax v253, v251, s[88:91], 0 offen offset:{word*4}")
def stage1(a, cfg):
    a(f".globl {K1}")
    a(".p2align 8")
    a(f".type {K1},@function")
    a.label(K1)
    a("s_cmp_ge_u32 s2, 256")
    a("s_cbranch_scc1 S1_exit")
    prof_start(a, cfg)
    dprof_start(a, cfg)
    a("s_load_dwordx16 s[16:31], s[0:1], 0")
    a("s_load_dwordx8 s[32:39], s[0:1], 64")
    a("s_load_dwordx2 s[40:41], s[0:1], 96")
    a("v_lshrrev_b32 v1, 6, v0")
    a(f"v_and_b32 v{V_LANE}, 63, v0")
    a(f"v_readfirstlane_b32 s{S_WID}, v1")
    a(f"s_and_b32 s{S_XCD}, s2, 7")
    a(f"s_lshr_b32 s{S_IDX}, s2, 3")
    a("s_waitcnt lgkmcnt(0)")
    a(f"s_cmp_ge_u32 s{S_IDX}, 30")
    a("s_cbranch_scc1 S1_aux")
    srd(a, R_O, P_WS, A2F_SIZE)
    if cfg.get("bfirst", 1):
        a(f"s_cmp_lt_u32 s{S_IDX}, 14")
        a(f"s_cselect_b32 s{S_TMP}, 16, -14")
        a(f"s_add_u32 s{S_IDX}, s{S_IDX}, s{S_TMP}")
    a(f"s_cmp_ge_u32 s{S_IDX}, 16")
    a("s_cbranch_scc1 S1_typeB")
    a(f"s_lshl_b32 s{S_TMP}, s{S_XCD}, 2")
    a(f"s_lshr_b32 s{S_TMP+1}, s{S_IDX}, 2")
    a(f"s_add_u32 s{S_TMP}, s{S_TMP}, s{S_TMP+1}")
    a(f"s_and_b32 s{S_TMP+1}, s{S_IDX}, 3")
    a(f"s_lshr_b32 s{S_K0}, s{S_IDX}, 2")
    a(f"s_add_u32 s{S_K0}, s{S_K0}, s{S_TMP+1}")
    a(f"s_and_b32 s{S_K0}, s{S_K0}, 3")
    a(f"s_cmp_ge_u32 s{S_TMP}, 16")
    a(f"s_cselect_b32 s{S_TMP+2}, s{P_CI}, s{P_CR}")
    a(f"s_cselect_b32 s{S_TMP+3}, s{P_CI+1}, s{P_CR+1}")
    a(f"s_cselect_b32 s{S_TMP+4}, 32, 0")
    srd(a, R_T, S_TMP+2, 2048*2048*2)
    srd(a, R_M1, P_AX, 2048*512*2)
    a(f"s_and_b32 s{S_TMP}, s{S_TMP}, 15")
    a(f"s_lshl_b32 s{S_T0}, s{S_TMP}, 19")
    a(f"s_lshl_b32 s{S_M0}, s{S_TMP+1}, 8")
    a(f"s_mul_i32 s{S_OBASE}, s{S_TMP}, {2*TT_STRIDE}")
    a(f"s_lshl_b32 s{S_TMP+1}, s{S_TMP+1}, 3")
    a(f"s_add_u32 s{S_TMP+1}, s{S_TMP+1}, s{S_TMP+4}")
    a(f"s_lshl_b32 s{S_TMP+1}, s{S_TMP+1}, 11")
    a(f"s_add_u32 s{S_OBASE}, s{S_OBASE}, s{S_TMP+1}")
    typeA(a, cfg)
    a.label("S1_typeB")
    srd(a, R_T, P_AX, 2048*512*2)
    srd(a, R_M1, P_WG, 512*1792*2)
    srd(a, R_M2, P_WU, 512*1792*2)
    a(f"s_sub_u32 s{S_TMP+1}, s{S_IDX}, 16")
    a(f"s_lshl_b32 s{S_TMP+1}, s{S_TMP+1}, 1")
    a(f"s_mul_i32 s{S_TMP+2}, s{S_XCD}, 28")
    a(f"s_add_u32 s{S_TMP+2}, s{S_TMP+2}, s{S_TMP+1}")
    a(f"s_lshr_b32 s{S_TMP+1}, s{S_TMP+2}, 4")
    a(f"s_and_b32 s{S_TMP+2}, s{S_TMP+2}, 15")
    if cfg.get("rotb", 0):
        a(f"s_lshr_b32 s{S_K0}, s{S_TMP+2}, 1")
        a(f"s_mul_i32 s{S_TMP+3}, s{S_TMP+1}, {cfg.get('cbmul', 0)}")
        a(f"s_add_u32 s{S_K0}, s{S_K0}, s{S_TMP+3}")
    else:
        a(f"s_mov_b32 s{S_K0}, 0")
    a(f"s_lshl_b32 s{S_T0}, s{S_TMP+2}, 17")
    a(f"s_lshl_b32 s{S_M0}, s{S_TMP+1}, 8")
    a(f"s_mul_i32 s{S_OBASE}, s{S_TMP+2}, {2*TT_STRIDE}")
    a(f"s_lshl_b32 s{S_TMP+1}, s{S_TMP+1}, 3")
    a(f"s_add_u32 s{S_TMP+1}, s{S_TMP+1}, 64")
    a(f"s_lshl_b32 s{S_TMP+1}, s{S_TMP+1}, 11")
    a(f"s_add_u32 s{S_OBASE}, s{S_OBASE}, s{S_TMP+1}")
    typeB(a, cfg)
    a.label("S1_aux")
    gen.aux_role(a, cfg)
    a.label("S1_exit")
    a("s_endpgm")

def build(cfg):
    cfg.setdefault("touch2", 0); cfg.setdefault("rot2", 0)
    a = Asm()
    stage1(a, cfg)
    nacc = gen.stage2(a, cfg)
    lds1 = 3 * 49152
    lds2 = 4 * 64 * 272
    out = HEADER
    out += f"; @launch kernel={K1} grid=(256,1,1) block=(512,1,1) lds={lds1}\n"
    out += f"; @launch kernel={K2} grid=(256,1,1) block=(256,1,1) lds={lds2}\n"
    out += '.amdgcn_target "amdgcn-amd-amdhsa--gfx950"\n.text\n'
    out += a.text()
    out += f""".section .rodata,"a"
.p2align 6
.amdhsa_kernel {K1}
  .amdhsa_next_free_vgpr 256
  .amdhsa_next_free_sgpr 100
  .amdhsa_accum_offset 256
  .amdhsa_group_segment_fixed_size 0
  .amdhsa_kernarg_size 104
  .amdhsa_user_sgpr_count 2
  .amdhsa_user_sgpr_kernarg_segment_ptr 1
  .amdhsa_system_sgpr_workgroup_id_x 1
.end_amdhsa_kernel
.p2align 6
.amdhsa_kernel {K2}
  .amdhsa_next_free_vgpr {256 + nacc}
  .amdhsa_next_free_sgpr 96
  .amdhsa_accum_offset 256
  .amdhsa_group_segment_fixed_size 0
  .amdhsa_kernarg_size 104
  .amdhsa_user_sgpr_count 2
  .amdhsa_user_sgpr_kernarg_segment_ptr 1
  .amdhsa_system_sgpr_workgroup_id_x 1
.end_amdhsa_kernel
"""
    return out

if __name__ == "__main__":
    cfg = {}
    outp = sys.argv[1]
    for kv in sys.argv[2:]:
        k, v = kv.split("=")
        cfg[k] = int(v)
    open(outp, "w").write(build(cfg))
    print("wrote", outp)
```
